```python
import torch

def _softmax(x, axis=-1):
    return torch.softmax(x, dim=axis)
def _gelu(x):
    return torch.nn.functional.gelu(x, approximate="tanh")
def _silu(x):
    return torch.nn.functional.silu(x)
def _sigmoid(x):
    return torch.sigmoid(x)
def _layernorm(x, axis=-1, eps=1e-5):
    m = x.mean(dim=axis, keepdim=True)
    v = x.var(dim=axis, keepdim=True, unbiased=False)
    return (x - m) / torch.sqrt(v + eps)
def _scatter_add(tgt, idx, src, axis=0):
    return tgt.clone().index_add_(axis, idx, src)
def _segment_sum(src, seg, n):
    out = torch.zeros((n,) + src.shape[1:], dtype=src.dtype)
    return out.index_add_(0, seg, src)
def _pad(x, pw):
    flat = tuple(v for pair in reversed(pw) for v in pair)
    return torch.nn.functional.pad(x, flat)

kernel_name = 'standalone__mpnn_edge_mlp__graph'

def setup_inputs():

    _w = (lambda a: (lambda t: t.to(torch.bfloat16) if t.is_floating_point() else t)(torch.as_tensor(a)))
    N, deg, D, De = 12500, 64, 64, max(16, 1)
    E = N * deg
    return {
        "x": _w((lambda *s: torch.randn(*s, dtype=torch.bfloat16) * 0.05)(N, D)),
        "e_attr": _w((lambda *s: torch.randn(*s, dtype=torch.bfloat16) * 0.4)(E, De)),
        "src": _w((lambda lo, hi, *s: torch.randint(lo, hi, s))(0, N, E).to(torch.int64)),
        "dst": _w((lambda lo, hi, *s: torch.randint(lo, hi, s))(0, N, E).to(torch.int64)),
        "w_msg": _w((lambda *s: torch.randn(*s, dtype=torch.bfloat16) * 0.4)(2 * D + De, D)),
        "w_upd": _w((lambda *s: torch.randn(*s, dtype=torch.bfloat16) * 0.05)(2 * D, D)),
    }

def reference(x, e_attr, src, dst, w_msg, w_upd):
    N, D = x.shape
    m_in = torch.concatenate([x[src], x[dst], e_attr], axis=-1)
    msg = _silu(m_in @ w_msg)
    agg = _segment_sum(msg, dst, N)
    return _silu(torch.concatenate([x, agg], axis=-1) @ w_upd)
```

```python
import sys, struct

N = 12500
E = 800000
CH = 4096
NCH = (E + CH - 1) // CH
NG = 512
GMAGIC = (2**32 * 128 + 3124) // 3125
for d in range(N):
    g = (d * GMAGIC) >> 32
    assert (g * 3125 + 127) >> 7 <= d < ((g + 1) * 3125 + 127) >> 7
assert ((N - 1) * GMAGIC) >> 32 == NG - 1

WS_SORT = 0x000000
WS_TAB = 0x400000
WS_P = 0x500000
WS_Q = 0x700000
WS_W3 = 0x900000
WS_WU = 0x901000
WS_SIZE = 0x1000000

LOG2E = struct.unpack("<I", struct.pack("<f", 1.4426950408889634))[0]
LN2 = struct.unpack("<I", struct.pack("<f", 0.6931471805599453))[0]

out = []
def e(s=""):
    out.append("    " + s if s and not s.endswith(":") else s)
def c(s):
    out.append("    ; " + s)
def vr(a, n):
    return f"v[{a}:{a+n-1}]"
def sr(a, n):
    return f"s[{a}:{a+n-1}]"

def srd(dst, lo, hi, nbytes, stride=0, add=0):
    if add:
        e(f"s_add_u32 s{dst}, s{lo}, {hex(add)}")
        e(f"s_addc_u32 s{dst+1}, s{hi}, 0")
        e(f"s_and_b32 s{dst+1}, s{dst+1}, 0xffff")
    else:
        e(f"s_mov_b32 s{dst}, s{lo}")
        e(f"s_and_b32 s{dst+1}, s{hi}, 0xffff")
    if stride:
        e(f"s_or_b32 s{dst+1}, s{dst+1}, {hex(stride << 16)}")
    e(f"s_mov_b32 s{dst+2}, {hex(nbytes)}")
    e(f"s_mov_b32 s{dst+3}, 0x20000")

def wave_scan(v, t):
    for sh in (1, 2, 4, 8):
        e("s_nop 1")
        e(f"v_add_u32_dpp v{v}, v{v}, v{v} row_shr:{sh} row_mask:0xf bank_mask:0xf bound_ctrl:0")
    e("s_nop 1")
    e(f"v_add_u32_dpp v{v}, v{v}, v{v} row_bcast:15 row_mask:0xa bank_mask:0xf")
    e("s_nop 1")
    e(f"v_add_u32_dpp v{v}, v{v}, v{v} row_bcast:31 row_mask:0xc bank_mask:0xf")
    e("s_nop 1")

def load_frag_pair(srd_s, voffA, voffB, tmp, dst):
    for nb in range(2):
        for j in range(8):
            vo = voffA if j < 4 else voffB
            e(f"buffer_load_ushort v{tmp+nb*8+j}, v{vo}, {sr(srd_s,4)}, 0 offen offset:{(j&3)*128+nb*64}")

def pack_frag_pair(tmp, dst):
    for nb in range(2):
        for q in range(4):
            e(f"v_lshl_or_b32 v{dst+nb*4+q}, v{tmp+nb*8+2*q+1}, 16, v{tmp+nb*8+2*q}")

MF = "v_mfma_f32_32x32x16_bf16"

K1_GRID = NCH + 64 + 2
K1_LDS = 20480

def gen_k1():
    e(".p2align 8")
    e(".globl mpnn_prep_kernel")
    e(".type mpnn_prep_kernel,@function")
    e("mpnn_prep_kernel:")
    e(f"s_cmp_ge_u32 s2, {K1_GRID}")
    e("s_cbranch_scc1 K1_END")
    e("s_load_dwordx4 s[4:7], s[0:1], 0")
    e("s_load_dwordx4 s[8:11], s[0:1], 16")
    e("s_load_dwordx4 s[12:15], s[0:1], 32")
    e("s_load_dwordx2 s[16:17], s[0:1], 64")
    e("v_lshrrev_b32 v1, 6, v0")
    e("v_and_b32 v2, 63, v0")
    e("v_readfirstlane_b32 s3, v1")
    e("v_lshlrev_b32 v3, 2, v0")
    e("v_mov_b32 v4, 0")
    e("ds_write_b32 v3, v4")
    e("s_waitcnt lgkmcnt(0)")
    srd(20, 16, 17, WS_SIZE)
    e(f"s_cmp_ge_u32 s2, {NCH}")
    e("s_cbranch_scc1 K1_NODE")
    srd(24, 8, 9, E * 4)
    srd(28, 10, 11, E * 4)
    e("s_lshl_b32 s32, s2, 14")
    e("s_add_u32 s33, s32, 8192")
    e("v_lshlrev_b32 v1, 4, v0")
    e("buffer_load_dwordx4 v[8:11], v1, s[28:31], s32 offen nt")
    e("buffer_load_dwordx4 v[12:15], v1, s[28:31], s33 offen nt")
    e("buffer_load_dwordx4 v[16:19], v1, s[24:27], s32 offen nt")
    e("buffer_load_dwordx4 v[20:23], v1, s[24:27], s33 offen nt")
    e("s_lshl_b32 s34, s2, 12")
    e("v_add_u32 v5, s34, v3")
    e(f"s_mov_b32 s35, {E}")
    e(f"s_mov_b32 s36, {E-2048}")
    e("v_cmp_gt_u32 s[38:39], s35, v5")
    e("v_cmp_gt_u32 s[40:41], s36, v5")
    e(f"s_mov_b32 s37, {hex(GMAGIC)}")
    e("v_mov_b32 v6, 1")
    e("v_lshlrev_b32 v7, 7, v0")
    e("s_barrier")
    for half in range(2):
        e(f"s_waitcnt vmcnt({3-half})")
        e(f"s_mov_b64 exec, s[{38+2*half}:{39+2*half}]")
        for j in range(4):
            d = 8 + half * 4 + j
            a = 24 + half * 4 + j
            e(f"v_mul_hi_u32 v{a}, v{d}, s37")
            e(f"v_lshlrev_b32 v{a}, 2, v{a}")
            e(f"ds_add_rtn_u32 v{32+half*4+j}, v{a}, v6")
    e("s_mov_b64 exec, -1")
    for half in range(2):
        e(f"s_waitcnt vmcnt({1-half})")
        for j in range(4):
            d = 8 + half * 4 + j
            s = 16 + half * 4 + j
            e(f"v_and_or_b32 v{d}, v{d}, 31, v7")
            k = (half * 2048 + j) << 5
            if k:
                e(f"v_or_b32 v{d}, {hex(k)}, v{d}")
            e(f"v_lshl_or_b32 v{d}, v{s}, 17, v{d}")
    e("s_waitcnt lgkmcnt(0)")
    e("s_barrier")
    e("v_lshlrev_b32 v40, 5, v2")
    e("ds_read_b128 v[44:47], v40")
    e("ds_read_b128 v[48:51], v40 offset:16")
    e("ds_read_b32 v41, v3")
    e("s_waitcnt lgkmcnt(1)")
    e("v_mov_b32 v52, 0")
    e("v_mov_b32 v53, v44")
    for j in range(2, 8):
        e(f"v_add_u32 v{52+j}, v{52+j-1}, v{44+j-1}")
    e("v_add_u32 v60, v59, v51")
    e("v_mov_b32 v61, v60")
    wave_scan(60, 62)
    e("v_sub_u32 v60, v60, v61")
    for j in range(8):
        e(f"v_add_u32 v{52+j}, v{52+j}, v60")
    e("ds_write_b128 v40, v[52:55] offset:2048")
    e("ds_write_b128 v40, v[56:59] offset:2064")
    e("ds_read_b32 v42, v3 offset:2048")
    for j in range(8):
        e(f"ds_read_b32 v{44+j}, v{24+j} offset:2048")
    e("s_and_b32 s42, s2, 7")
    e("s_lshl_b32 s42, s42, 7")
    e("s_lshr_b32 s43, s2, 3")
    e("s_lshl_b32 s43, s43, 2")
    e("s_add_u32 s42, s42, s43")
    e(f"s_add_u32 s42, s42, {hex(WS_TAB)}")
    e("v_lshlrev_b32 v43, 10, v0")
    e("s_waitcnt lgkmcnt(8)")
    e("v_lshl_or_b32 v42, v41, 16, v42")
    e("buffer_store_dword v42, v43, s[20:23], s42 offen")
    e("s_waitcnt lgkmcnt(0)")
    for half in range(2):
        e(f"s_mov_b64 exec, s[{38+2*half}:{39+2*half}]")
        for j in range(4):
            i = half * 4 + j
            e(f"v_add_lshl_u32 v{44+i}, v{44+i}, v{32+i}, 2")
            e(f"ds_write_b32 v{44+i}, v{8+i} offset:4096")
    e("s_mov_b64 exec, -1")
    e("s_waitcnt lgkmcnt(0)")
    e("s_barrier")
    e("ds_read_b128 v[8:11], v1 offset:4096")
    e("ds_read_b128 v[12:15], v1 offset:12288")
    e("s_waitcnt lgkmcnt(1)")
    e("buffer_store_dwordx4 v[8:11], v1, s[20:23], s32 offen")
    e("s_waitcnt lgkmcnt(0)")
    e("buffer_store_dwordx4 v[12:15], v1, s[20:23], s33 offen")
    e("s_endpgm")

    e("K1_NODE:")
    srd(24, 12, 13, 144 * 128)
    srd(28, 14, 15, 128 * 128)
    srd(44, 4, 5, N * 128)
    srd(48, 16, 17, N * 128, add=WS_P)
    e("v_and_b32 v5, 31, v2")
    e("v_lshrrev_b32 v6, 5, v2")
    e("s_lshl_b32 s32, s3, 11")
    e("v_lshlrev_b32 v7, 1, v5")
    e("v_lshlrev_b32 v10, 4, v2")
    e(f"s_mov_b32 s37, {hex(LOG2E)}")
    e(f"s_cmp_ge_u32 s2, {NCH+64}")
    e("s_cbranch_scc1 K1_WGT")
    e("v_lshl_add_u32 v8, v6, 10, v7")
    e("v_add_u32 v8, s32, v8")
    e("v_add_u32 v9, 512, v8")
    load_frag_pair(24, 8, 9, 16, 0)
    e(f"s_sub_u32 s33, s2, {NCH}")
    e("s_lshl_b32 s33, s33, 3")
    e("s_add_u32 s33, s33, s3")
    e("s_mul_i32 s34, s33, 3125")
    e("s_add_u32 s35, s34, 3252")
    e("s_add_u32 s34, s34, 127")
    e("s_lshr_b32 s34, s34, 7")
    e("s_lshr_b32 s35, s35, 7")
    e("v_subrev_u32 v11, s34, v5")
    e("v_and_b32 v11, 31, v11")
    e("v_add_u32 v11, s34, v11")
    e("v_cmp_gt_u32 s[38:39], s35, v11")
    e("v_lshlrev_b32 v11, 7, v11")
    e("v_lshl_add_u32 v11, v6, 4, v11")
    for s in range(4):
        e(f"buffer_load_dwordx4 {vr(32+4*s,4)}, v11, s[44:47], 0 offen offset:{s*32}")
    e("s_waitcnt vmcnt(4)")
    pack_frag_pair(16, 48)
    e("v_add_u32 v12, s32, v10")
    e("s_barrier")
    e("ds_write_b128 v12, v[48:51]")
    e("ds_write_b128 v12, v[52:55] offset:1024")
    e("s_waitcnt lgkmcnt(0)")
    e("s_barrier")
    def rd(which, nb, base):
        for s in range(4):
            e(f"ds_read_b128 {vr(base+4*s,4)}, v10 offset:{(which*8+s*2+nb)*1024}")
    rd(0, 0, 16)
    rd(0, 1, 48)
    e("s_waitcnt vmcnt(0) lgkmcnt(4)")
    for s in range(4):
        e(f"{MF} v[64:79], {vr(16+4*s,4)}, {vr(32+4*s,4)}, {'0' if s==0 else 'v[64:79]'}")
    rd(1, 0, 16)
    e("s_waitcnt lgkmcnt(4)")
    for s in range(4):
        e(f"{MF} v[80:95], {vr(48+4*s,4)}, {vr(32+4*s,4)}, {'0' if s==0 else 'v[80:95]'}")
    rd(1, 1, 48)
    e("s_waitcnt lgkmcnt(4)")
    for s in range(4):
        e(f"{MF} v[96:111], {vr(32+4*s,4)}, {vr(16+4*s,4)}, {'0' if s==0 else 'v[96:111]'}")
    e("s_waitcnt lgkmcnt(0)")
    for s in range(4):
        e(f"{MF} v[112:127], {vr(32+4*s,4)}, {vr(48+4*s,4)}, {'0' if s==0 else 'v[112:127]'}")
    e("s_lshl_b32 s36, s33, 12")
    e(f"s_add_u32 s36, s36, {hex(WS_Q)}")
    for blk in range(4):
        base = 64 + 16 * blk
        if blk == 3:
            e("s_nop 7")
        for i in range(16):
            e(f"v_mul_f32 v{base+i}, s37, v{base+i}")
        for q in range(8):
            e(f"v_cvt_pk_bf16_f32 v{base+q}, v{base+2*q}, v{base+2*q+1}")
        nb = blk & 1
        if blk < 2:
            e("s_mov_b64 exec, s[38:39]")
            for AB in range(2):
                e(f"buffer_store_dwordx4 {vr(base+4*AB,4)}, v11, s[48:51], 0 offen offset:{nb*64+AB*32}")
            e("s_mov_b64 exec, -1")
        else:
            for AB in range(2):
                e(f"buffer_store_dwordx4 {vr(base+4*AB,4)}, v10, s[20:23], s36 offen offset:{(AB*2+nb)*1024}")
    e("s_endpgm")

    e("K1_WGT:")
    e(f"s_cmp_eq_u32 s2, {NCH+64}")
    e("s_cbranch_scc0 K1_W3")
    e("s_cmp_lt_u32 s3, 4")
    e("s_cselect_b32 s33, 10, 9")
    e("s_cselect_b32 s34, 1, 2")
    e("s_lshl_b32 s34, s34, 9")
    e("v_lshlrev_b32 v8, s33, v6")
    e("v_add3_u32 v8, v8, v7, s32")
    e("v_add_u32 v9, s34, v8")
    load_frag_pair(28, 8, 9, 16, 0)
    e("s_lshl_b32 s35, s3, 10")
    e(f"s_add_u32 s35, s35, {hex(WS_WU)}")
    e("s_add_u32 s36, s35, 8192")
    e("s_waitcnt vmcnt(0)")
    pack_frag_pair(16, 48)
    e("buffer_store_dwordx4 v[48:51], v10, s[20:23], s35 offen")
    e("buffer_store_dwordx4 v[52:55], v10, s[20:23], s36 offen")
    e("s_endpgm")

    e("K1_W3:")
    e("s_cmp_lg_u32 s3, 0")
    e("s_cbranch_scc1 K1_END")
    e("v_lshl_add_u32 v8, v6, 10, v7")
    e("v_add_u32 v8, 0x4000, v8")
    e("v_add_u32 v9, 512, v8")
    load_frag_pair(24, 8, 9, 16, 0)
    e(f"s_mov_b32 s35, {hex(WS_W3)}")
    e("s_waitcnt vmcnt(0)")
    for i in range(16):
        e(f"v_lshlrev_b32 v{16+i}, 16, v{16+i}")
        e(f"v_mul_f32 v{32+i}, s37, v{16+i}")
    for q in range(8):
        e(f"v_cvt_pk_bf16_f32 v{48+q}, v{32+2*q}, v{33+2*q}")
    for q in range(8):
        e(f"v_lshlrev_b32 v64, 16, v{48+q}")
        e(f"v_and_b32 v65, 0xffff0000, v{48+q}")
        e(f"v_fma_f32 v64, v{16+2*q}, s37, -v64")
        e(f"v_fma_f32 v65, v{17+2*q}, s37, -v65")
        e(f"v_cvt_pk_bf16_f32 v{56+q}, v64, v65")
    for f in range(4):
        e(f"buffer_store_dwordx4 {vr(48+4*f,4)}, v10, s[20:23], s35 offen offset:{f*1024}")
    e("K1_END:")
    e("s_endpgm")

CAPT = 64
PADT = 24
L_ER = 0
L_LA = 16384
L_LB = L_LA + (CAPT + PADT) * 64
L_T = L_LB + (CAPT + PADT) * 128
L_M = L_T + 2560
L_MISC = L_M + 4 * 2560
L_XR = (L_MISC + 64 + 255) // 256 * 256
K2_LDS = L_XR + 32768
NQ = 6

V_I = 8
V_W3 = 16
V_Q = 32
V_ACC = 48
V_C = (80, 112)
V_AP = 144
V_AE = 160
V_AS = 164
V_SM = 172
V_T = 180
V_MS = 196
V_XI = 212
V_EA = 220
V_EB = 221
V_DB = 222
V_AMP = (223, 224)
V_AT = 225
V_RA = 226
V_RB = 227
V_RD = 228
V_XRD = 229
V_ERD = 233
V_MRD = 234
V_CM = 235
V_CT = 236
V_EH = 237
V_ONE = 238
V_ZERO = 239
V_LANE = 240
V_H = 241
V_N = 242
V_SEG = 243
V_CNT = 244
V_POS = 245
V_KD = 246
V_CHB = 247
V_REM = 248
V_NODEOFF = 249
K2_VGPRS = 252

S_WS = 20
S_EA = 24
S_P = 28
S_X = 32
S_OUT = 36
S_WAVE = 3
S_START = 40
S_END = 41
S_TOTAL = 42
S_WINLO = 43
S_NT = 44
S_XB = 45
S_EB = 46
S_MASK = 47
S_DPAD = 48
S_80 = 49
S_VALID = 50
S_TMP = 52

def k2_list_reads(par_off, what):
    pass

def gen_iter(par, silu=True, first=False):
    Cc = V_C[par]
    Cn = V_C[par ^ 1]
    def chain(nb):
        d = vr(Cn + 16 * nb, 16)
        L = []
        L.append(f"{MF} {d}, {vr(V_AP+8*nb,4)}, {vr(V_I,4)}, 0")
        L.append(f"{MF} {d}, {vr(V_AP+8*nb+4,4)}, {vr(V_I+4,4)}, {d}")
        L.append(f"{MF} {d}, {vr(V_AE,4)}, {vr(V_W3+4*nb,4)}, {d}")
        L.append(f"{MF} {d}, {vr(V_AE,4)}, {vr(V_W3+8+4*nb,4)}, {d}")
        L.append(f"{MF} {d}, {vr(V_AS,4)}, {vr(V_Q+4*nb,4)}, {d}")
        L.append(f"{MF} {d}, {vr(V_AS+4,4)}, {vr(V_Q+8+4*nb,4)}, {d}")
        return L
    def seg(nb):
        d = vr(V_ACC + 16 * nb, 16)
        return [f"{MF} {d}, {vr(V_MS+8*nb+4*s,4)}, {vr(V_SM+4*s,4)}, {d}" for s in range(2)]

    def dma():
        L = []
        slot = par ^ 1
        L.append(f"v_and_or_b32 v{V_EA}, v{V_EB}, s{S_MASK}, v{V_EH}")
        for k in range(4):
            L.append(f"s_add_u32 m0, s{S_XB}, {slot*4096+k*1024}")
            L.append("s_nop 0")
            L.append(f"buffer_load_dwordx4 {vr(V_XI+2*k,2)}, {sr(S_P,4)}, 0 idxen offen lds")
        L.append(f"s_add_u32 m0, s{S_EB}, {par*1024}")
        L.append("s_nop 0")
        L.append(f"buffer_load_dwordx4 v{V_EA}, {sr(S_EA,4)}, 0 offen lds")
        return L
    def smbuild():
        a = V_AMP[par]
        return [f"ds_write_b16 v{a}, v{V_ONE}",
                f"ds_read_b128 {vr(V_SM,4)}, v{V_MRD}",
                f"ds_read_b128 {vr(V_SM+4,4)}, v{V_MRD} offset:32",
                f"ds_write_b16 v{a}, v{V_ZERO}"]
    def daddr():
        return [f"v_and_b32 v{V_DB}, 31, v{V_DB}",
                f"v_mad_u32_u24 v{V_AT}, v{V_DB}, s{S_80}, v{V_CT}",
                f"v_mad_u32_u24 v{V_AMP[par]}, v{V_DB}, s{S_80}, v{V_CM}"]
    def endreads():
        L = []
        L.append("s_waitcnt vmcnt(6)")
        slot = par
        for s in range(4):
            L.append(f"ds_read_b128 {vr(V_AP+4*s,4)}, v{V_XRD+s} offset:{slot*4096}")
        L.append(f"ds_read_b128 {vr(V_AE,4)}, v{V_ERD} offset:{par*1024}")
        L.append(f"ds_read_b128 {vr(V_AS,4)}, v{V_AT}")
        L.append(f"ds_read_b128 {vr(V_AS+4,4)}, v{V_AT} offset:32")
        for k in range(4):
            L.append(f"ds_read_u16 v{V_XI+2*k}, v{V_RA} offset:{(par+4)*256+k*16}")
        L.append(f"ds_read_b32 v{V_EB}, v{V_RB} offset:{(par+5)*512}")
        L.append(f"ds_read_b32 v{V_DB}, v{V_RD} offset:{(par+3)*512}")
        if par == 1:
            L.append(f"v_add_u32 v{V_RA}, 512, v{V_RA}")
            L.append(f"v_add_u32 v{V_RB}, 1024, v{V_RB}")
            L.append(f"v_add_u32 v{V_RD}, 1024, v{V_RD}")
            L.append(f"v_xor_b32 v{V_ERD}, 2048, v{V_ERD}")
            L.append(f"s_xor_b32 s{S_EB}, s{S_EB}, 2048")
        return L

    if not silu:
        e("s_waitcnt lgkmcnt(0)")
        for x in dma():
            e(x)
        for x in chain(0) + chain(1):
            e(x)
        for x in daddr():
            e(x)
        for x in endreads():
            e(x)
        return

    mf = seg(1) + chain(0) + seg(0) + chain(1)
    mi = 0
    for nb in range(2):
        y = Cc + 16 * nb
        for phase in range(2):
            for i in range(16):
                if i % 4 == 0:
                    slot = mi
                    if slot == 2:
                        e("s_waitcnt lgkmcnt(4)")
                    if slot == 8:
                        e("s_waitcnt lgkmcnt(0)")
                    if not (first and slot < 2):
                        e(mf[mi])
                    mi += 1
                    if slot == 1:
                        for x in smbuild():
                            e(x)
                    if slot == 2:
                        for x in dma():
                            e(x)
                    if slot == 9:
                        for x in daddr():
                            e(x)
                    if slot == 15:
                        for x in endreads():
                            e(x)
                if phase == 0:
                    e(f"v_exp_f32 v{V_T+i}, -v{y+i}")
                else:
                    e(f"v_rcp_f32 v{V_T+i}, v{V_T+i}")
            if phase == 0:
                for i in range(0, 16, 2):
                    e(f"v_pk_add_f32 {vr(V_T+i,2)}, {vr(V_T+i,2)}, 1.0 op_sel_hi:[1,0]")
            else:
                for i in range(0, 16, 2):
                    e(f"v_pk_mul_f32 {vr(V_T+i,2)}, {vr(y+i,2)}, {vr(V_T+i,2)}")
                for i in range(0, 16, 2):
                    e(f"v_cvt_pk_bf16_f32 v{V_MS+8*nb+i//2}, v{V_T+i}, v{V_T+i+1}")

def fill_pads():
    e(f"v_lshlrev_b32 v{V_T}, 4, v0")
    for k in range(4):
        e(f"v_mov_b32 v{V_T+4+k}, 0")
        e(f"v_mov_b32 v{V_T+8+k}, s{S_DPAD}")
    nA = (CAPT + PADT) * 64 // 16
    nB = (CAPT + PADT) * 128 // 16
    e(f"ds_write_b128 v{V_T}, {vr(V_T+4,4)} offset:{L_LA}")
    for k in range(nB // 256):
        e(f"ds_write_b128 v{V_T}, {vr(V_T+8,4)} offset:{L_LB+k*4096}")
    e(f"v_cmp_gt_u32 vcc, {nB%256}, v0")
    e("s_mov_b64 exec, vcc")
    e(f"ds_write_b128 v{V_T}, {vr(V_T+8,4)} offset:{L_LB+(nB//256)*4096}")
    e(f"v_cmp_gt_u32 vcc, {nA-256}, v0")
    e("s_mov_b64 exec, vcc")
    e(f"ds_write_b128 v{V_T}, {vr(V_T+4,4)} offset:{L_LA+4096}")
    e("s_mov_b64 exec, -1")

def rec_loads(lbl):
    R = V_C[0]
    e(f"v_lshl_add_u32 v{V_T}, v{V_KD}, 2, v{V_SEG}")
    e(f"v_sub_u32 v{V_T+1}, v{V_CNT}, v{V_KD}")
    for q in range(NQ):
        e(f"v_cmpx_lt_i32 vcc, {4*q}, v{V_T+1}")
        e(f"s_cbranch_execz {lbl}")
        e(f"buffer_load_dwordx4 {vr(R+4*q,4)}, v{V_T}, {sr(S_WS,4)}, 0 offen offset:{16*q}")
    e(f"{lbl}:")
    e("s_mov_b64 exec, -1")

def gen_k2():
    e(".p2align 8")
    e(".globl mpnn_main_kernel")
    e(".type mpnn_main_kernel,@function")
    e("mpnn_main_kernel:")
    e(f"s_cmp_ge_u32 s2, {NG}")
    e("s_cbranch_scc1 K2_END")
    e("s_load_dwordx4 s[4:7], s[0:1], 0")
    e("s_load_dwordx2 s[8:9], s[0:1], 48")
    e("s_load_dwordx2 s[10:11], s[0:1], 64")
    e("v_lshrrev_b32 v1, 6, v0")
    e(f"v_and_b32 v{V_LANE}, 63, v0")
    e(f"v_readfirstlane_b32 s{S_WAVE}, v1")
    e(f"v_and_b32 v{V_N}, 31, v0")
    e(f"v_bfe_u32 v{V_H}, v0, 5, 1")
    e(f"s_mul_i32 s{S_START}, s2, 3125")
    e(f"s_add_u32 s{S_END}, s{S_START}, 3252")
    e(f"s_add_u32 s{S_START}, s{S_START}, 127")
    e(f"s_lshr_b32 s{S_START}, s{S_START}, 7")
    e(f"s_lshr_b32 s{S_END}, s{S_END}, 7")
    e(f"s_add_u32 s{S_DPAD}, s{S_START}, 31")
    e(f"s_and_b32 s{S_DPAD}, s{S_DPAD}, 31")
    e(f"s_mov_b32 s{S_MASK}, 0xffffffe0")
    e(f"s_mov_b32 s{S_80}, 80")
    e("v_lshlrev_b32 v2, 2, v0")
    e(f"v_lshlrev_b32 v3, 4, v{V_LANE}")
    e("s_lshl_b32 s12, s2, 10")
    e(f"s_add_u32 s12, s12, {hex(WS_TAB)}")
    e("s_lshl_b32 s13, s2, 12")
    e(f"s_add_u32 s13, s13, {hex(WS_Q)}")
    e(f"s_mov_b32 s14, {hex(WS_W3)}")
    e("s_waitcnt lgkmcnt(0)")
    srd(S_WS, 10, 11, WS_SIZE)
    e(f"buffer_load_dword v4, v2, {sr(S_WS,4)}, s12 offen")
    for f in range(4):
        e(f"buffer_load_dwordx4 {vr(V_Q+4*f,4)}, v3, {sr(S_WS,4)}, s13 offen offset:{f*1024}")
    for f in range(4):
        e(f"buffer_load_dwordx4 {vr(V_W3+4*f,4)}, v3, {sr(S_WS,4)}, s14 offen offset:{f*1024}")
    srd(S_EA, 6, 7, E * 32)
    srd(S_P, 10, 11, N * 128, stride=128, add=WS_P)
    srd(S_X, 4, 5, N * 128)
    srd(S_OUT, 8, 9, N * 128)
    fill_pads()
    e(f"v_lshlrev_b32 v5, 4, v0")
    for k in range(3):
        e(f"ds_write_b128 v5, {vr(V_T+4,4)} offset:{L_T+k*4096}")
    e("v_cmp_gt_u32 vcc, 32, v0")
    e("s_mov_b64 exec, vcc")
    e(f"ds_write_b128 v5, {vr(V_T+4,4)} offset:{L_T+3*4096}")
    e("s_mov_b64 exec, -1")
    e(f"v_lshrrev_b32 v5, 4, v{V_N}")
    e("v_lshlrev_b32 v5, 5, v5")
    e(f"v_bfe_u32 v6, v{V_N}, 2, 1")
    e("v_lshl_add_u32 v5, v6, 4, v5")
    e(f"v_bfe_u32 v6, v{V_N}, 3, 1")
    e("v_lshl_add_u32 v5, v6, 3, v5")
    e(f"v_and_b32 v6, 3, v{V_N}")
    e("v_lshl_add_u32 v5, v6, 1, v5")
    e(f"s_mul_i32 s{S_TMP}, s{S_WAVE}, 2560")
    e(f"s_add_u32 s{S_TMP}, s{S_TMP}, {L_M}")
    e(f"v_add_u32 v{V_CM}, s{S_TMP}, v5")
    e(f"v_lshlrev_b32 v6, 4, v{V_H}")
    e(f"v_add_u32 v{V_CT}, {L_T}, v6")
    e(f"v_mad_u32_u24 v7, v{V_N}, s{S_80}, v6")
    e(f"v_add_u32 v{V_MRD}, s{S_TMP}, v7")
    e(f"v_mov_b32 v{V_ONE}, 0x3f80")
    e(f"v_mov_b32 v{V_ZERO}, 0")
    e(f"s_lshl_b32 s{S_XB}, s{S_WAVE}, 13")
    e(f"s_add_u32 s{S_XB}, s{S_XB}, {L_XR}")
    e(f"s_lshl_b32 s{S_EB}, s{S_WAVE}, 12")
    e(f"s_add_u32 s{S_EB}, s{S_EB}, {L_ER}")
    e(f"v_bfe_u32 v1, v{V_N}, 1, 3")
    e(f"v_xor_b32 v1, v1, v{V_H}")
    e(f"v_lshlrev_b32 v{V_XRD}, 7, v{V_N}")
    e(f"v_add_u32 v{V_XRD}, s{S_XB}, v{V_XRD}")
    for s in (3, 2, 1, 0):
        e(f"v_xor_b32 v{V_T}, {2*s}, v1")
        e(f"v_lshl_add_u32 v{V_XRD+s}, v{V_T}, 4, v{V_XRD}")
    e(f"v_bfe_u32 v1, v{V_N}, 3, 1")
    e(f"v_xor_b32 v1, v1, v{V_H}")
    e("v_lshlrev_b32 v1, 4, v1")
    e(f"v_lshl_add_u32 v1, v{V_N}, 5, v1")
    e(f"v_add_u32 v{V_ERD}, s{S_EB}, v1")
    e(f"v_lshrrev_b32 v1, 4, v{V_LANE}")
    e(f"v_xor_b32 v1, v1, v{V_LANE}")
    e("v_and_b32 v1, 1, v1")
    e(f"v_lshlrev_b32 v{V_EH}, 4, v1")
    e(f"v_lshrrev_b32 v1, 4, v{V_LANE}")
    e(f"v_xor_b32 v1, v1, v{V_LANE}")
    e("v_and_b32 v1, 7, v1")
    e(f"v_lshlrev_b32 v{V_XI+1}, 4, v1")
    e(f"v_xor_b32 v{V_XI+3}, 64, v{V_XI+1}")
    e(f"v_mov_b32 v{V_XI+5}, v{V_XI+1}")
    e(f"v_mov_b32 v{V_XI+7}, v{V_XI+3}")
    e(f"v_subrev_u32 v1, s{S_START}, v{V_N}")
    e("v_and_b32 v1, 31, v1")
    e(f"v_add_u32 v1, s{S_START}, v1")
    e(f"v_cmp_gt_u32 {sr(S_VALID,2)}, s{S_END}, v1")
    e(f"v_lshlrev_b32 v{V_NODEOFF}, 7, v1")
    for i in range(32):
        e(f"v_mov_b32 v{V_ACC+i}, 0")
    e("v_lshrrev_b32 v1, 5, v0")
    e(f"v_lshl_add_u32 v1, v{V_N}, 3, v1")
    e(f"v_lshlrev_b32 v{V_CHB}, 17, v1")
    e(f"v_cmp_gt_u32 vcc, {NCH}, v1")
    e(f"v_lshlrev_b32 v{V_SEG}, 14, v1")
    e(f"v_mov_b32 v{V_KD}, 0")
    e("s_waitcnt vmcnt(8)")
    e("v_cndmask_b32 v4, 0, v4, vcc")
    e(f"v_lshrrev_b32 v{V_CNT}, 16, v4")
    e("v_and_b32 v4, 0xffff, v4")
    e(f"v_lshl_add_u32 v{V_SEG}, v4, 2, v{V_SEG}")
    rec_loads("K2_RL0")
    e(f"v_mov_b32 v{V_POS}, v{V_CNT}")
    wave_scan(V_POS, 1)
    e(f"v_readlane_b32 s{S_TMP}, v{V_POS}, 63")
    e(f"v_sub_u32 v{V_POS}, v{V_POS}, v{V_CNT}")
    e(f"s_lshl_b32 s{S_TMP+1}, s{S_WAVE}, 2")
    e(f"v_mov_b32 v1, s{S_TMP}")
    e(f"v_mov_b32 v4, s{S_TMP+1}")
    e(f"ds_write_b32 v4, v1 offset:{L_MISC}")
    e("s_waitcnt lgkmcnt(0)")
    e("s_barrier")
    e(f"v_mad_u32_u24 v5, v{V_N}, s{S_80}, v5")
    e(f"ds_write_b16 v5, v{V_ONE} offset:{L_T}")
    e(f"ds_read_b128 v[4:7], v{V_ZERO} offset:{L_MISC}")
    e(f"v_mad_u32_u24 v1, v{V_N}, s{S_80}, v{V_CT}")
    e(f"ds_read_b128 {vr(V_I,4)}, v1")
    e(f"ds_read_b128 {vr(V_I+4,4)}, v1 offset:32")
    e("s_waitcnt lgkmcnt(2)")
    e("v_readfirstlane_b32 s12, v4")
    e("v_readfirstlane_b32 s13, v5")
    e("v_readfirstlane_b32 s14, v6")
    e("v_readfirstlane_b32 s15, v7")
    e("s_nop 1")
    e("s_add_u32 s16, s12, s13")
    e("s_add_u32 s17, s16, s14")
    e(f"s_add_u32 s{S_TOTAL}, s17, s15")
    e(f"s_cmp_eq_u32 s{S_WAVE}, 1")
    e("s_cselect_b32 s18, s12, 0")
    e(f"s_cmp_eq_u32 s{S_WAVE}, 2")
    e("s_cselect_b32 s18, s16, s18")
    e(f"s_cmp_eq_u32 s{S_WAVE}, 3")
    e("s_cselect_b32 s18, s17, s18")
    e(f"v_add_u32 v{V_POS}, s18, v{V_POS}")
    e(f"s_mov_b32 s{S_WINLO}, 0")
    e("K2_ROUND:")
    R = V_C[0]
    e(f"s_add_u32 s{S_TMP}, s{S_WINLO}, {CAPT*32}")
    e(f"v_add_u32 v1, v{V_POS}, v{V_KD}")
    e(f"v_sub_u32 v{V_REM}, s{S_TMP}, v1")
    e(f"v_sub_u32 v4, v{V_CNT}, v{V_KD}")
    e(f"v_min_i32 v{V_REM}, v{V_REM}, v4")
    e("K2_COPY:")
    e(f"v_add_u32 v1, v{V_POS}, v{V_KD}")
    e(f"v_subrev_u32 v1, s{S_WINLO}, v1")
    e("v_lshlrev_b32 v4, 1, v1")
    e("v_lshlrev_b32 v5, 2, v1")
    e(f"s_mov_b32 s{S_TMP}, 0x1ffff")
    e("s_waitcnt vmcnt(0)")
    for i in range(4 * NQ):
        e(f"v_cmpx_lt_i32 vcc, {i}, v{V_REM}")
        if i % 2 == 0:
            e("s_cbranch_execz K2_CPD")
        e(f"v_lshrrev_b32 v6, 17, v{R+i}")
        e(f"v_and_or_b32 v7, v{R+i}, s{S_TMP}, v{V_CHB}")
        e(f"ds_write_b16 v4, v6 offset:{L_LA+2*i}")
        e(f"ds_write_b32 v5, v7 offset:{L_LB+4*i}")
    e("K2_CPD:")
    e("s_mov_b64 exec, -1")
    e(f"v_med3_i32 v1, v{V_REM}, 0, {4*NQ}")
    e(f"v_add_u32 v{V_KD}, v{V_KD}, v1")
    e(f"v_subrev_u32 v{V_REM}, {4*NQ}, v{V_REM}")
    e(f"v_cmp_lt_i32 vcc, 0, v{V_REM}")
    e("s_cbranch_vccz K2_CPE")
    rec_loads("K2_RL1")
    e("s_branch K2_COPY")
    e("K2_CPE:")
    e("s_waitcnt lgkmcnt(0)")
    e("s_barrier")
    e(f"s_sub_u32 s{S_TMP}, s{S_TOTAL}, s{S_WINLO}")
    e(f"s_min_u32 s{S_TMP}, s{S_TMP}, {CAPT*32}")
    e(f"s_add_u32 s{S_TMP}, s{S_TMP}, 31")
    e(f"s_lshr_b32 s{S_TMP}, s{S_TMP}, 5")
    e(f"s_add_u32 s{S_TMP}, s{S_TMP}, 3")
    e(f"s_sub_u32 s{S_TMP}, s{S_TMP}, s{S_WAVE}")
    e(f"s_lshr_b32 s{S_NT}, s{S_TMP}, 2")
    e(f"s_cmp_eq_u32 s{S_NT}, 0")
    e("s_cbranch_scc1 K2_RDONE")
    e(f"s_lshl_b32 s{S_TMP}, s{S_WAVE}, 6")
    e(f"s_add_u32 s{S_TMP}, s{S_TMP}, {L_LA-512}")
    e(f"v_lshrrev_b32 v1, 3, v{V_LANE}")
    e(f"v_lshl_add_u32 v{V_RA}, v1, 1, s{S_TMP}")
    e(f"s_lshl_b32 s{S_TMP}, s{S_WAVE}, 7")
    e(f"s_add_u32 s{S_TMP}, s{S_TMP}, {L_LB-1024}")
    e(f"v_lshrrev_b32 v1, 1, v{V_LANE}")
    e(f"v_lshl_add_u32 v{V_RB}, v1, 2, s{S_TMP}")
    e(f"v_lshl_add_u32 v{V_RD}, v{V_N}, 2, s{S_TMP}")
    e(f"s_or_b32 s{S_EB}, s{S_EB}, 2048")
    e(f"v_and_b32 v{V_ERD}, 0xfffff7ff, v{V_ERD}")
    T = V_T
    for k in range(4):
        e(f"ds_read_u16 v{V_XI+2*k}, v{V_RA} offset:{2*256+k*16}")
    for j in range(3):
        e(f"ds_read_b32 v{T+j}, v{V_RB} offset:{(2+j)*512}")
    for k in range(4):
        e(f"ds_read_u16 v{T+4+k}, v{V_RA} offset:{3*256+k*16}")
    e(f"ds_read_b32 v{V_DB}, v{V_RD} offset:{2*512}")
    e("s_waitcnt lgkmcnt(0)")
    for j in range(3):
        e(f"v_and_or_b32 v{T+j}, v{T+j}, s{S_MASK}, v{V_EH}")
    e(f"s_xor_b32 s{S_TMP}, s{S_EB}, 2048")
    e(f"s_mov_b32 m0, s{S_TMP}")
    e("s_nop 0")
    e(f"buffer_load_dwordx4 v{T}, {sr(S_EA,4)}, 0 offen lds")
    for k in range(4):
        e(f"s_add_u32 m0, s{S_XB}, {k*1024}")
        e("s_nop 0")
        e(f"buffer_load_dwordx4 {vr(V_XI+2*k,2)}, {sr(S_P,4)}, 0 idxen offen lds")
    e(f"s_add_u32 m0, s{S_TMP}, 1024")
    for k in range(4):
        e(f"v_mov_b32 v{V_XI+2*k}, v{T+4+k}")
    e(f"buffer_load_dwordx4 v{T+1}, {sr(S_EA,4)}, 0 offen lds")
    for k in range(4):
        e(f"s_add_u32 m0, s{S_XB}, {4096+k*1024}")
        e("s_nop 0")
        e(f"buffer_load_dwordx4 {vr(V_XI+2*k,2)}, {sr(S_P,4)}, 0 idxen offen lds")
    e(f"s_mov_b32 m0, s{S_EB}")
    e("s_nop 0")
    e(f"buffer_load_dwordx4 v{T+2}, {sr(S_EA,4)}, 0 offen lds")
    e(f"v_and_b32 v{V_DB}, 31, v{V_DB}")
    e(f"v_mad_u32_u24 v{V_AT}, v{V_DB}, s{S_80}, v{V_CT}")
    e(f"v_mad_u32_u24 v{V_AMP[0]}, v{V_DB}, s{S_80}, v{V_CM}")
    e("s_waitcnt vmcnt(6)")
    for s in range(4):
        e(f"ds_read_b128 {vr(V_AP+4*s,4)}, v{V_XRD+s}")
    e(f"ds_read_b128 {vr(V_AE,4)}, v{V_ERD}")
    e(f"ds_read_b128 {vr(V_AS,4)}, v{V_AT}")
    e(f"ds_read_b128 {vr(V_AS+4,4)}, v{V_AT} offset:32")
    for k in range(4):
        e(f"ds_read_u16 v{V_XI+2*k}, v{V_RA} offset:{4*256+k*16}")
    e(f"ds_read_b32 v{V_EB}, v{V_RB} offset:{5*512}")
    e(f"ds_read_b32 v{V_DB}, v{V_RD} offset:{3*512}")
    gen_iter(1, silu=False)
    for i in range(8):
        e(f"v_mov_b32 v{V_MS+8+i}, 0")
        e(f"v_mov_b32 v{V_SM+i}, 0")
    e("K2_LOOP:")
    gen_iter(0)
    e(f"s_sub_u32 s{S_NT}, s{S_NT}, 1")
    e(f"s_cmp_eq_u32 s{S_NT}, 0")
    e("s_cbranch_scc1 K2_LEND")
    gen_iter(1)
    e(f"s_sub_u32 s{S_NT}, s{S_NT}, 1")
    e(f"s_cmp_lg_u32 s{S_NT}, 0")
    e("s_cbranch_scc1 K2_LOOP")
    e("K2_LEND:")
    e("s_nop 1")
    d = vr(V_ACC + 16, 16)
    for s in range(2):
        e(f"{MF} {d}, {vr(V_MS+8+4*s,4)}, {vr(V_SM+4*s,4)}, {d}")
    e("s_waitcnt vmcnt(0) lgkmcnt(0)")
    e("K2_RDONE:")
    e(f"s_add_u32 s{S_WINLO}, s{S_WINLO}, {CAPT*32}")
    e(f"s_cmp_ge_u32 s{S_WINLO}, s{S_TOTAL}")
    e("s_cbranch_scc1 K2_EPI")
    e("s_barrier")
    fill_pads()
    rec_loads("K2_RL2")
    e("s_waitcnt lgkmcnt(0)")
    e("s_barrier")
    e("s_branch K2_ROUND")
    e("K2_EPI:")
    XF = V_C[0]
    WU = V_C[0] + 16
    e(f"v_lshl_add_u32 v1, v{V_H}, 4, v{V_NODEOFF}")
    for s in range(4):
        e(f"buffer_load_dwordx4 {vr(XF+4*s,4)}, v1, {sr(S_X,4)}, 0 offen offset:{s*32}")
    e(f"s_and_b32 s{S_TMP}, s{S_WAVE}, 1")
    e(f"s_lshl_b32 s{S_TMP}, s{S_TMP}, 13")
    e(f"s_add_u32 s{S_TMP}, s{S_TMP}, {hex(WS_WU)}")
    e(f"s_add_u32 s{S_TMP+1}, s{S_TMP}, 4096")
    for ks in range(8):
        e(f"buffer_load_dwordx4 {vr(WU+4*ks,4)}, v3, {sr(S_WS,4)}, s{S_TMP+(ks>>2)} offen offset:{(ks&3)*1024}")
    e("s_barrier")
    e(f"v_add_u32 v4, s{S_XB}, v3")
    e("s_nop 7")
    for q in range(8):
        e(f"ds_write_b128 v4, {vr(V_ACC+4*q,4)} offset:{q*1024}")
    e("s_waitcnt lgkmcnt(0)")
    e("s_barrier")
    e(f"s_lshl_b32 s{S_TMP}, s{S_WAVE}, 11")
    e(f"s_add_u32 s{S_TMP}, s{S_TMP}, {L_XR}")
    e(f"v_add_u32 v4, s{S_TMP}, v3")
    RB = V_AP
    for w in range(4):
        for qq in range(2):
            e(f"ds_read_b128 {vr(RB+8*w+4*qq,4)}, v4 offset:{w*8192+qq*1024}")
    e(f"s_mov_b32 s{S_TMP+1}, {hex(LN2)}")
    e("s_waitcnt lgkmcnt(0)")
    for i in range(8):
        e(f"v_add_f32 v{RB+i}, v{RB+i}, v{RB+8+i}")
        e(f"v_add_f32 v{RB+16+i}, v{RB+16+i}, v{RB+24+i}")
    for i in range(8):
        e(f"v_add_f32 v{RB+i}, v{RB+i}, v{RB+16+i}")
    for i in range(8):
        e(f"v_mul_f32 v{RB+i}, s{S_TMP+1}, v{RB+i}")
    for q in range(4):
        e(f"v_cvt_pk_bf16_f32 v{RB+8+q}, v{RB+2*q}, v{RB+2*q+1}")
    e(f"s_lshl_b32 s{S_TMP}, s{S_WAVE}, 10")
    e(f"v_add_u32 v4, s{S_TMP}, v3")
    e(f"ds_write_b128 v4, {vr(RB+8,4)} offset:{L_ER}")
    e("s_waitcnt lgkmcnt(0)")
    e("s_barrier")
    e(f"s_cmp_ge_u32 s{S_WAVE}, 2")
    e("s_cbranch_scc1 K2_END")
    AG = V_AP
    for ks in range(4):
        e(f"ds_read_b128 {vr(AG+4*ks,4)}, v3 offset:{L_ER+ks*1024}")
    U = V_ACC
    e("s_waitcnt vmcnt(0)")
    for ks in range(4):
        e(f"{MF} {vr(U,16)}, {vr(WU+4*ks,4)}, {vr(XF+4*ks,4)}, {'0' if ks==0 else vr(U,16)}")
    e("s_waitcnt lgkmcnt(0)")
    for ks in range(4):
        e(f"{MF} {vr(U,16)}, {vr(WU+16+4*ks,4)}, {vr(AG+4*ks,4)}, {vr(U,16)}")
    e(f"s_mov_b32 s{S_TMP+1}, {hex(LOG2E)}")
    e(f"s_lshl_b32 s{S_TMP}, s{S_WAVE}, 6")
    e(f"v_lshl_add_u32 v1, v{V_H}, 3, v{V_NODEOFF}")
    e("s_nop 15")
    for q in range(8):
        e(f"v_cvt_pk_bf16_f32 v{V_T+q}, v{U+2*q}, v{U+2*q+1}")
    for q in range(8):
        e(f"v_lshlrev_b32 v{U+2*q}, 16, v{V_T+q}")
        e(f"v_and_b32 v{U+2*q+1}, 0xffff0000, v{V_T+q}")
    for i in range(16):
        e(f"v_mul_f32 v{V_T+i}, s{S_TMP+1}, v{U+i}")
    for i in range(16):
        e(f"v_exp_f32 v{V_T+i}, -v{V_T+i}")
    for i in range(16):
        e(f"v_add_f32 v{V_T+i}, 1.0, v{V_T+i}")
    for i in range(16):
        e(f"v_rcp_f32 v{V_T+i}, v{V_T+i}")
    for i in range(16):
        e(f"v_mul_f32 v{V_T+i}, v{U+i}, v{V_T+i}")
    for q in range(8):
        e(f"v_cvt_pk_bf16_f32 v{U+q}, v{V_T+2*q}, v{V_T+2*q+1}")
    e(f"s_mov_b64 exec, {sr(S_VALID,2)}")
    for q in range(4):
        e(f"buffer_store_dwordx2 {vr(U+2*q,2)}, v1, {sr(S_OUT,4)}, s{S_TMP} offen offset:{q*16}")
    e("K2_END:")
    e("s_endpgm")

def kd(name, vgprs, sgprs):
    acc = (vgprs + 3) // 4 * 4
    return f""".p2align 6
.amdhsa_kernel {name}
  .amdhsa_next_free_vgpr {vgprs}
  .amdhsa_next_free_sgpr {sgprs}
  .amdhsa_accum_offset {acc}
  .amdhsa_group_segment_fixed_size 0
  .amdhsa_kernarg_size 72
  .amdhsa_user_sgpr_count 2
  .amdhsa_user_sgpr_kernarg_segment_ptr 1
  .amdhsa_system_sgpr_workgroup_id_x 1
.end_amdhsa_kernel
"""

def main(path):
    hdr = f"""; MPNN edge-MLP: out = silu([x, segsum(silu([x[src], x[dst], e] @ w_msg), dst)] @ w_upd)
; @launch kernel=mpnn_prep_kernel grid=({K1_GRID},1,1) block=(512,1,1) lds={K1_LDS}
; @launch kernel=mpnn_main_kernel grid=({NG},1,1) block=(256,1,1) lds={K2_LDS}
.amdgcn_target "amdgcn-amd-amdhsa--gfx950"
.text
"""
    gen_k1()
    gen_k2()
    body = "\n".join(out) + "\n"
    tail = '.section .rodata,"a"\n' + kd("mpnn_prep_kernel", 128, 64) + kd("mpnn_main_kernel", K2_VGPRS, 64)
    open(path, "w").write(hdr + body + tail)

if __name__ == "__main__":
    main(sys.argv[1] if len(sys.argv) > 1 else "standalone__mpnn_edge_mlp__graph.s")
```

```python
import sys, struct

N = 12500
E = 800000
CH = 4096
NCH = (E + CH - 1) // CH
NG = 512
GMAGIC = (2**32 * 128 + 3124) // 3125
for d in range(N):
    g = (d * GMAGIC) >> 32
    assert (g * 3125 + 127) >> 7 <= d < ((g + 1) * 3125 + 127) >> 7
assert ((N - 1) * GMAGIC) >> 32 == NG - 1

WS_SORT = 0x000000
WS_TAB = 0x400000
WS_P = 0x500000
WS_Q = 0x700000
WS_W3 = 0x900000
WS_WU = 0x901000
WS_SIZE = 0x1000000

LOG2E = struct.unpack("<I", struct.pack("<f", 1.4426950408889634))[0]
LN2 = struct.unpack("<I", struct.pack("<f", 0.6931471805599453))[0]

import os
DIAG = int(os.environ.get("DIAG", "0"))
WS_STAMP = 0xA00000
out = []
def stamp(k):
    if DIAG:
        e(f"s_memrealtime s[{64+2*k}:{65+2*k}]")
def stamp_flush(n, kern, wavereg, tmpv, srdws):
    if not DIAG:
        return
    e("s_waitcnt lgkmcnt(0)")
    e("s_mov_b64 exec, 1")
    e(f"s_lshl_b32 s62, s2, 3")
    e(f"s_add_u32 s62, s62, s{wavereg}")
    e(f"s_lshl_b32 s62, s62, 6")
    e(f"s_add_u32 s62, s62, {hex(WS_STAMP+kern*0x100000)}")
    e(f"v_mov_b32 v{tmpv}, 0")
    for k in range(n):
        e(f"v_mov_b32 v{tmpv+1}, s{64+2*k}")
        e(f"buffer_store_dword v{tmpv+1}, v{tmpv}, s[{srdws}:{srdws+3}], s62 offen offset:{4*k}")
def e(s=""):
    out.append("    " + s if s and not s.endswith(":") else s)
def c(s):
    out.append("    ; " + s)
def vr(a, n):
    return f"v[{a}:{a+n-1}]"
def sr(a, n):
    return f"s[{a}:{a+n-1}]"

def srd(dst, lo, hi, nbytes, stride=0, add=0):
    if add:
        e(f"s_add_u32 s{dst}, s{lo}, {hex(add)}")
        e(f"s_addc_u32 s{dst+1}, s{hi}, 0")
        e(f"s_and_b32 s{dst+1}, s{dst+1}, 0xffff")
    else:
        e(f"s_mov_b32 s{dst}, s{lo}")
        e(f"s_and_b32 s{dst+1}, s{hi}, 0xffff")
    if stride:
        e(f"s_or_b32 s{dst+1}, s{dst+1}, {hex(stride << 16)}")
    e(f"s_mov_b32 s{dst+2}, {hex(nbytes)}")
    e(f"s_mov_b32 s{dst+3}, 0x20000")

def wave_scan(v, t):
    for sh in (1, 2, 4, 8):
        e("s_nop 1")
        e(f"v_add_u32_dpp v{v}, v{v}, v{v} row_shr:{sh} row_mask:0xf bank_mask:0xf bound_ctrl:0")
    e("s_nop 1")
    e(f"v_add_u32_dpp v{v}, v{v}, v{v} row_bcast:15 row_mask:0xa bank_mask:0xf")
    e("s_nop 1")
    e(f"v_add_u32_dpp v{v}, v{v}, v{v} row_bcast:31 row_mask:0xc bank_mask:0xf")
    e("s_nop 1")

def load_frag_pair(srd_s, voffA, voffB, tmp, dst):
    for nb in range(2):
        for j in range(8):
            vo = voffA if j < 4 else voffB
            e(f"buffer_load_ushort v{tmp+nb*8+j}, v{vo}, {sr(srd_s,4)}, 0 offen offset:{(j&3)*128+nb*64}")

def pack_frag_pair(tmp, dst):
    for nb in range(2):
        for q in range(4):
            e(f"v_lshl_or_b32 v{dst+nb*4+q}, v{tmp+nb*8+2*q+1}, 16, v{tmp+nb*8+2*q}")

MF = "v_mfma_f32_32x32x16_bf16"

K1_GRID = NCH + 64 + 2
K1_LDS = 20480

def gen_k1():
    e(".p2align 8")
    e(".globl mpnn_prep_kernel")
    e(".type mpnn_prep_kernel,@function")
    e("mpnn_prep_kernel:")
    e(f"s_cmp_ge_u32 s2, {K1_GRID}")
    e("s_cbranch_scc1 K1_END")
    stamp(0)
    e("s_load_dwordx4 s[4:7], s[0:1], 0")
    e("s_load_dwordx4 s[8:11], s[0:1], 16")
    e("s_load_dwordx4 s[12:15], s[0:1], 32")
    e("s_load_dwordx2 s[16:17], s[0:1], 64")
    e("v_lshrrev_b32 v1, 6, v0")
    e("v_and_b32 v2, 63, v0")
    e("v_readfirstlane_b32 s3, v1")
    e("v_lshlrev_b32 v3, 2, v0")
    e("v_mov_b32 v4, 0")
    e("ds_write_b32 v3, v4")
    e("s_waitcnt lgkmcnt(0)")
    srd(20, 16, 17, WS_SIZE)
    stamp(1)
    e(f"s_cmp_ge_u32 s2, {NCH}")
    e("s_cbranch_scc1 K1_NODE")
    srd(24, 8, 9, E * 4)
    srd(28, 10, 11, E * 4)
    e("s_lshl_b32 s32, s2, 14")
    e("s_add_u32 s33, s32, 8192")
    e("v_lshlrev_b32 v1, 4, v0")
    e("buffer_load_dwordx4 v[8:11], v1, s[28:31], s32 offen nt")
    e("buffer_load_dwordx4 v[12:15], v1, s[28:31], s33 offen nt")
    e("buffer_load_dwordx4 v[16:19], v1, s[24:27], s32 offen nt")
    e("buffer_load_dwordx4 v[20:23], v1, s[24:27], s33 offen nt")
    e("s_lshl_b32 s34, s2, 12")
    e("v_add_u32 v5, s34, v3")
    e(f"s_mov_b32 s35, {E}")
    e(f"s_mov_b32 s36, {E-2048}")
    e("v_cmp_gt_u32 s[38:39], s35, v5")
    e("v_cmp_gt_u32 s[40:41], s36, v5")
    e(f"s_mov_b32 s37, {hex(GMAGIC)}")
    e("v_mov_b32 v6, 1")
    e("v_lshlrev_b32 v7, 7, v0")
    e("s_barrier")
    for half in range(2):
        e(f"s_waitcnt vmcnt({3-half})")
        e(f"s_mov_b64 exec, s[{38+2*half}:{39+2*half}]")
        for j in range(4):
            d = 8 + half * 4 + j
            a = 24 + half * 4 + j
            e(f"v_mul_hi_u32 v{a}, v{d}, s37")
            e(f"v_lshlrev_b32 v{a}, 2, v{a}")
            e(f"ds_add_rtn_u32 v{32+half*4+j}, v{a}, v6")
    e("s_mov_b64 exec, -1")
    stamp(2)
    for half in range(2):
        e(f"s_waitcnt vmcnt({1-half})")
        for j in range(4):
            d = 8 + half * 4 + j
            s = 16 + half * 4 + j
            e(f"v_and_or_b32 v{d}, v{d}, 31, v7")
            k = (half * 2048 + j) << 5
            if k:
                e(f"v_or_b32 v{d}, {hex(k)}, v{d}")
            e(f"v_lshl_or_b32 v{d}, v{s}, 17, v{d}")
    e("s_waitcnt lgkmcnt(0)")
    e("s_barrier")
    e("v_lshlrev_b32 v40, 5, v2")
    e("ds_read_b128 v[44:47], v40")
    e("ds_read_b128 v[48:51], v40 offset:16")
    e("ds_read_b32 v41, v3")
    e("s_waitcnt lgkmcnt(1)")
    e("v_mov_b32 v52, 0")
    e("v_mov_b32 v53, v44")
    for j in range(2, 8):
        e(f"v_add_u32 v{52+j}, v{52+j-1}, v{44+j-1}")
    e("v_add_u32 v60, v59, v51")
    e("v_mov_b32 v61, v60")
    wave_scan(60, 62)
    e("v_sub_u32 v60, v60, v61")
    for j in range(8):
        e(f"v_add_u32 v{52+j}, v{52+j}, v60")
    e("ds_write_b128 v40, v[52:55] offset:2048")
    e("ds_write_b128 v40, v[56:59] offset:2064")
    e("ds_read_b32 v42, v3 offset:2048")
    for j in range(8):
        e(f"ds_read_b32 v{44+j}, v{24+j} offset:2048")
    e("s_and_b32 s42, s2, 7")
    e("s_lshl_b32 s42, s42, 7")
    e("s_lshr_b32 s43, s2, 3")
    e("s_lshl_b32 s43, s43, 2")
    e("s_add_u32 s42, s42, s43")
    e(f"s_add_u32 s42, s42, {hex(WS_TAB)}")
    e("v_lshlrev_b32 v43, 10, v0")
    e("s_waitcnt lgkmcnt(8)")
    e("v_lshl_or_b32 v42, v41, 16, v42")
    e("buffer_store_dword v42, v43, s[20:23], s42 offen")
    e("s_waitcnt lgkmcnt(0)")
    for half in range(2):
        e(f"s_mov_b64 exec, s[{38+2*half}:{39+2*half}]")
        for j in range(4):
            i = half * 4 + j
            e(f"v_add_lshl_u32 v{44+i}, v{44+i}, v{32+i}, 2")
            e(f"ds_write_b32 v{44+i}, v{8+i} offset:4096")
    e("s_mov_b64 exec, -1")
    e("s_waitcnt lgkmcnt(0)")
    e("s_barrier")
    e("ds_read_b128 v[8:11], v1 offset:4096")
    e("ds_read_b128 v[12:15], v1 offset:12288")
    e("s_waitcnt lgkmcnt(1)")
    e("buffer_store_dwordx4 v[8:11], v1, s[20:23], s32 offen")
    e("s_waitcnt lgkmcnt(0)")
    e("buffer_store_dwordx4 v[12:15], v1, s[20:23], s33 offen")
    stamp(3)
    if DIAG:
        e("s_waitcnt vmcnt(0)")
    stamp(4)
    stamp_flush(5, 0, 3, 30, 20)
    e("s_endpgm")

    e("K1_NODE:")
    srd(24, 12, 13, 144 * 128)
    srd(28, 14, 15, 128 * 128)
    srd(44, 4, 5, N * 128)
    srd(48, 16, 17, N * 128, add=WS_P)
    e("v_and_b32 v5, 31, v2")
    e("v_lshrrev_b32 v6, 5, v2")
    e("s_lshl_b32 s32, s3, 11")
    e("v_lshlrev_b32 v7, 1, v5")
    e("v_lshlrev_b32 v10, 4, v2")
    e(f"s_mov_b32 s37, {hex(LOG2E)}")
    e(f"s_cmp_ge_u32 s2, {NCH+64}")
    e("s_cbranch_scc1 K1_WGT")
    e("v_lshl_add_u32 v8, v6, 10, v7")
    e("v_add_u32 v8, s32, v8")
    e("v_add_u32 v9, 512, v8")
    load_frag_pair(24, 8, 9, 16, 0)
    e(f"s_sub_u32 s33, s2, {NCH}")
    e("s_lshl_b32 s33, s33, 3")
    e("s_add_u32 s33, s33, s3")
    e("s_mul_i32 s34, s33, 3125")
    e("s_add_u32 s35, s34, 3252")
    e("s_add_u32 s34, s34, 127")
    e("s_lshr_b32 s34, s34, 7")
    e("s_lshr_b32 s35, s35, 7")
    e("v_subrev_u32 v11, s34, v5")
    e("v_and_b32 v11, 31, v11")
    e("v_add_u32 v11, s34, v11")
    e("v_cmp_gt_u32 s[38:39], s35, v11")
    e("v_lshlrev_b32 v11, 7, v11")
    e("v_lshl_add_u32 v11, v6, 4, v11")
    for s in range(4):
        e(f"buffer_load_dwordx4 {vr(32+4*s,4)}, v11, s[44:47], 0 offen offset:{s*32}")
    e("s_waitcnt vmcnt(4)")
    pack_frag_pair(16, 48)
    e("v_add_u32 v12, s32, v10")
    e("s_barrier")
    e("ds_write_b128 v12, v[48:51]")
    e("ds_write_b128 v12, v[52:55] offset:1024")
    e("s_waitcnt lgkmcnt(0)")
    e("s_barrier")
    def rd(which, nb, base):
        for s in range(4):
            e(f"ds_read_b128 {vr(base+4*s,4)}, v10 offset:{(which*8+s*2+nb)*1024}")
    rd(0, 0, 16)
    rd(0, 1, 48)
    e("s_waitcnt vmcnt(0) lgkmcnt(4)")
    for s in range(4):
        e(f"{MF} v[64:79], {vr(16+4*s,4)}, {vr(32+4*s,4)}, {'0' if s==0 else 'v[64:79]'}")
    rd(1, 0, 16)
    e("s_waitcnt lgkmcnt(4)")
    for s in range(4):
        e(f"{MF} v[80:95], {vr(48+4*s,4)}, {vr(32+4*s,4)}, {'0' if s==0 else 'v[80:95]'}")
    rd(1, 1, 48)
    e("s_waitcnt lgkmcnt(4)")
    for s in range(4):
        e(f"{MF} v[96:111], {vr(32+4*s,4)}, {vr(16+4*s,4)}, {'0' if s==0 else 'v[96:111]'}")
    e("s_waitcnt lgkmcnt(0)")
    for s in range(4):
        e(f"{MF} v[112:127], {vr(32+4*s,4)}, {vr(48+4*s,4)}, {'0' if s==0 else 'v[112:127]'}")
    e("s_lshl_b32 s36, s33, 12")
    e(f"s_add_u32 s36, s36, {hex(WS_Q)}")
    for blk in range(4):
        base = 64 + 16 * blk
        if blk == 3:
            e("s_nop 7")
        for i in range(16):
            e(f"v_mul_f32 v{base+i}, s37, v{base+i}")
        for q in range(8):
            e(f"v_cvt_pk_bf16_f32 v{base+q}, v{base+2*q}, v{base+2*q+1}")
        nb = blk & 1
        if blk < 2:
            e("s_mov_b64 exec, s[38:39]")
            for AB in range(2):
                e(f"buffer_store_dwordx4 {vr(base+4*AB,4)}, v11, s[48:51], 0 offen offset:{nb*64+AB*32}")
            e("s_mov_b64 exec, -1")
        else:
            for AB in range(2):
                e(f"buffer_store_dwordx4 {vr(base+4*AB,4)}, v10, s[20:23], s36 offen offset:{(AB*2+nb)*1024}")
    stamp(2)
    stamp(3)
    if DIAG:
        e("s_waitcnt vmcnt(0)")
    stamp(4)
    stamp_flush(5, 0, 3, 30, 20)
    e("s_endpgm")

    e("K1_WGT:")
    e(f"s_cmp_eq_u32 s2, {NCH+64}")
    e("s_cbranch_scc0 K1_W3")
    e("s_cmp_lt_u32 s3, 4")
    e("s_cselect_b32 s33, 10, 9")
    e("s_cselect_b32 s34, 1, 2")
    e("s_lshl_b32 s34, s34, 9")
    e("v_lshlrev_b32 v8, s33, v6")
    e("v_add3_u32 v8, v8, v7, s32")
    e("v_add_u32 v9, s34, v8")
    load_frag_pair(28, 8, 9, 16, 0)
    e("s_lshl_b32 s35, s3, 10")
    e(f"s_add_u32 s35, s35, {hex(WS_WU)}")
    e("s_add_u32 s36, s35, 8192")
    e("s_waitcnt vmcnt(0)")
    pack_frag_pair(16, 48)
    e("buffer_store_dwordx4 v[48:51], v10, s[20:23], s35 offen")
    e("buffer_store_dwordx4 v[52:55], v10, s[20:23], s36 offen")
    e("s_endpgm")

    e("K1_W3:")
    e("s_cmp_lg_u32 s3, 0")
    e("s_cbranch_scc1 K1_END")
    e("v_lshl_add_u32 v8, v6, 10, v7")
    e("v_add_u32 v8, 0x4000, v8")
    e("v_add_u32 v9, 512, v8")
    load_frag_pair(24, 8, 9, 16, 0)
    e(f"s_mov_b32 s35, {hex(WS_W3)}")
    e("s_waitcnt vmcnt(0)")
    for i in range(16):
        e(f"v_lshlrev_b32 v{16+i}, 16, v{16+i}")
        e(f"v_mul_f32 v{32+i}, s37, v{16+i}")
    for q in range(8):
        e(f"v_cvt_pk_bf16_f32 v{48+q}, v{32+2*q}, v{33+2*q}")
    for q in range(8):
        e(f"v_lshlrev_b32 v64, 16, v{48+q}")
        e(f"v_and_b32 v65, 0xffff0000, v{48+q}")
        e(f"v_fma_f32 v64, v{16+2*q}, s37, -v64")
        e(f"v_fma_f32 v65, v{17+2*q}, s37, -v65")
        e(f"v_cvt_pk_bf16_f32 v{56+q}, v64, v65")
    for f in range(4):
        e(f"buffer_store_dwordx4 {vr(48+4*f,4)}, v10, s[20:23], s35 offen offset:{f*1024}")
    e("K1_END:")
    e("s_endpgm")

CAPT = 64
PADT = 24
L_ER = 0
L_LA = 16384
L_LB = L_LA + (CAPT + PADT) * 64
L_T = L_LB + (CAPT + PADT) * 128
L_M = L_T + 2560
L_MISC = L_M + 4 * 2560
L_XR = (L_MISC + 64 + 255) // 256 * 256
K2_LDS = L_XR + 32768
NQ = 6

V_I = 8
V_W3 = 16
V_Q = 32
V_ACC = 48
V_C = (80, 112)
V_AP = 144
V_AE = 160
V_AS = 164
V_SM = 172
V_T = 180
V_MS = 196
V_XI = 212
V_EA = 220
V_EB = 221
V_DB = 222
V_AMP = (223, 224)
V_AT = 225
V_RA = 226
V_RB = 227
V_RD = 228
V_XRD = 229
V_ERD = 233
V_MRD = 234
V_CM = 235
V_CT = 236
V_EH = 237
V_ONE = 238
V_ZERO = 239
V_LANE = 240
V_H = 241
V_N = 242
V_SEG = 243
V_CNT = 244
V_POS = 245
V_KD = 246
V_CHB = 247
V_REM = 248
V_NODEOFF = 249
K2_VGPRS = 252

S_WS = 20
S_EA = 24
S_P = 28
S_X = 32
S_OUT = 36
S_WAVE = 3
S_START = 40
S_END = 41
S_TOTAL = 42
S_WINLO = 43
S_NT = 44
S_XB = 45
S_EB = 46
S_MASK = 47
S_DPAD = 48
S_80 = 49
S_VALID = 50
S_TMP = 52

def k2_list_reads(par_off, what):
    pass

def gen_iter(par, silu=True, first=False):
    Cc = V_C[par]
    Cn = V_C[par ^ 1]
    def chain(nb):
        d = vr(Cn + 16 * nb, 16)
        L = []
        L.append(f"{MF} {d}, {vr(V_AP+8*nb,4)}, {vr(V_I,4)}, 0")
        L.append(f"{MF} {d}, {vr(V_AP+8*nb+4,4)}, {vr(V_I+4,4)}, {d}")
        L.append(f"{MF} {d}, {vr(V_AE,4)}, {vr(V_W3+4*nb,4)}, {d}")
        L.append(f"{MF} {d}, {vr(V_AE,4)}, {vr(V_W3+8+4*nb,4)}, {d}")
        L.append(f"{MF} {d}, {vr(V_AS,4)}, {vr(V_Q+4*nb,4)}, {d}")
        L.append(f"{MF} {d}, {vr(V_AS+4,4)}, {vr(V_Q+8+4*nb,4)}, {d}")
        return L
    def seg(nb):
        d = vr(V_ACC + 16 * nb, 16)
        return [f"{MF} {d}, {vr(V_MS+8*nb+4*s,4)}, {vr(V_SM+4*s,4)}, {d}" for s in range(2)]

    def dma():
        L = []
        slot = par ^ 1
        L.append(f"v_and_or_b32 v{V_EA}, v{V_EB}, s{S_MASK}, v{V_EH}")
        for k in range(4):
            L.append(f"s_add_u32 m0, s{S_XB}, {slot*4096+k*1024}")
            L.append("s_nop 0")
            L.append(f"buffer_load_dwordx4 {vr(V_XI+2*k,2)}, {sr(S_P,4)}, 0 idxen offen lds")
        L.append(f"s_add_u32 m0, s{S_EB}, {par*1024}")
        L.append("s_nop 0")
        L.append(f"buffer_load_dwordx4 v{V_EA}, {sr(S_EA,4)}, 0 offen lds")
        return L
    def smbuild():
        a = V_AMP[par]
        return [f"ds_write_b16 v{a}, v{V_ONE}",
                f"ds_read_b128 {vr(V_SM,4)}, v{V_MRD}",
                f"ds_read_b128 {vr(V_SM+4,4)}, v{V_MRD} offset:32",
                f"ds_write_b16 v{a}, v{V_ZERO}"]
    def daddr():
        return [f"v_and_b32 v{V_DB}, 31, v{V_DB}",
                f"v_mad_u32_u24 v{V_AT}, v{V_DB}, s{S_80}, v{V_CT}",
                f"v_mad_u32_u24 v{V_AMP[par]}, v{V_DB}, s{S_80}, v{V_CM}"]
    def endreads():
        L = []
        L.append("s_waitcnt vmcnt(6)")
        slot = par
        for s in range(4):
            L.append(f"ds_read_b128 {vr(V_AP+4*s,4)}, v{V_XRD+s} offset:{slot*4096}")
        L.append(f"ds_read_b128 {vr(V_AE,4)}, v{V_ERD} offset:{par*1024}")
        L.append(f"ds_read_b128 {vr(V_AS,4)}, v{V_AT}")
        L.append(f"ds_read_b128 {vr(V_AS+4,4)}, v{V_AT} offset:32")
        for k in range(4):
            L.append(f"ds_read_u16 v{V_XI+2*k}, v{V_RA} offset:{(par+4)*256+k*16}")
        L.append(f"ds_read_b32 v{V_EB}, v{V_RB} offset:{(par+5)*512}")
        L.append(f"ds_read_b32 v{V_DB}, v{V_RD} offset:{(par+3)*512}")
        if par == 1:
            L.append(f"v_add_u32 v{V_RA}, 512, v{V_RA}")
            L.append(f"v_add_u32 v{V_RB}, 1024, v{V_RB}")
            L.append(f"v_add_u32 v{V_RD}, 1024, v{V_RD}")
            L.append(f"v_xor_b32 v{V_ERD}, 2048, v{V_ERD}")
            L.append(f"s_xor_b32 s{S_EB}, s{S_EB}, 2048")
        return L

    if not silu:
        e("s_waitcnt lgkmcnt(0)")
        for x in dma():
            e(x)
        for x in chain(0) + chain(1):
            e(x)
        for x in daddr():
            e(x)
        for x in endreads():
            e(x)
        return

    mf = seg(1) + chain(0) + seg(0) + chain(1)
    mi = 0
    for nb in range(2):
        y = Cc + 16 * nb
        for phase in range(2):
            for i in range(16):
                if i % 4 == 0:
                    slot = mi
                    if slot == 2:
                        e("s_waitcnt lgkmcnt(4)")
                    if slot == 8:
                        e("s_waitcnt lgkmcnt(0)")
                    if not (first and slot < 2):
                        e(mf[mi])
                    mi += 1
                    if slot == 1:
                        for x in smbuild():
                            e(x)
                    if slot == 2:
                        for x in dma():
                            e(x)
                    if slot == 9:
                        for x in daddr():
                            e(x)
                    if slot == 15:
                        for x in endreads():
                            e(x)
                if phase == 0:
                    e(f"v_exp_f32 v{V_T+i}, -v{y+i}")
                else:
                    e(f"v_rcp_f32 v{V_T+i}, v{V_T+i}")
            if phase == 0:
                for i in range(0, 16, 2):
                    e(f"v_pk_add_f32 {vr(V_T+i,2)}, {vr(V_T+i,2)}, 1.0 op_sel_hi:[1,0]")
            else:
                for i in range(0, 16, 2):
                    e(f"v_pk_mul_f32 {vr(V_T+i,2)}, {vr(y+i,2)}, {vr(V_T+i,2)}")
                for i in range(0, 16, 2):
                    e(f"v_cvt_pk_bf16_f32 v{V_MS+8*nb+i//2}, v{V_T+i}, v{V_T+i+1}")

def fill_pads():
    e(f"v_lshlrev_b32 v{V_T}, 4, v0")
    for k in range(4):
        e(f"v_mov_b32 v{V_T+4+k}, 0")
        e(f"v_mov_b32 v{V_T+8+k}, s{S_DPAD}")
    nA = (CAPT + PADT) * 64 // 16
    nB = (CAPT + PADT) * 128 // 16
    e(f"ds_write_b128 v{V_T}, {vr(V_T+4,4)} offset:{L_LA}")
    for k in range(nB // 256):
        e(f"ds_write_b128 v{V_T}, {vr(V_T+8,4)} offset:{L_LB+k*4096}")
    e(f"v_cmp_gt_u32 vcc, {nB%256}, v0")
    e("s_mov_b64 exec, vcc")
    e(f"ds_write_b128 v{V_T}, {vr(V_T+8,4)} offset:{L_LB+(nB//256)*4096}")
    e(f"v_cmp_gt_u32 vcc, {nA-256}, v0")
    e("s_mov_b64 exec, vcc")
    e(f"ds_write_b128 v{V_T}, {vr(V_T+4,4)} offset:{L_LA+4096}")
    e("s_mov_b64 exec, -1")

def rec_loads(lbl):
    R = V_C[0]
    e(f"v_lshl_add_u32 v{V_T}, v{V_KD}, 2, v{V_SEG}")
    e(f"v_sub_u32 v{V_T+1}, v{V_CNT}, v{V_KD}")
    for q in range(NQ):
        e(f"v_cmpx_lt_i32 vcc, {4*q}, v{V_T+1}")
        e(f"s_cbranch_execz {lbl}")
        e(f"buffer_load_dwordx4 {vr(R+4*q,4)}, v{V_T}, {sr(S_WS,4)}, 0 offen offset:{16*q}")
    e(f"{lbl}:")
    e("s_mov_b64 exec, -1")

def gen_k2():
    e(".p2align 8")
    e(".globl mpnn_main_kernel")
    e(".type mpnn_main_kernel,@function")
    e("mpnn_main_kernel:")
    e(f"s_cmp_ge_u32 s2, {NG}")
    e("s_cbranch_scc1 K2_END")
    stamp(0)
    e("s_load_dwordx4 s[4:7], s[0:1], 0")
    e("s_load_dwordx2 s[8:9], s[0:1], 48")
    e("s_load_dwordx2 s[10:11], s[0:1], 64")
    e("v_lshrrev_b32 v1, 6, v0")
    e(f"v_and_b32 v{V_LANE}, 63, v0")
    e(f"v_readfirstlane_b32 s{S_WAVE}, v1")
    e(f"v_and_b32 v{V_N}, 31, v0")
    e(f"v_bfe_u32 v{V_H}, v0, 5, 1")
    e(f"s_mul_i32 s{S_START}, s2, 3125")
    e(f"s_add_u32 s{S_END}, s{S_START}, 3252")
    e(f"s_add_u32 s{S_START}, s{S_START}, 127")
    e(f"s_lshr_b32 s{S_START}, s{S_START}, 7")
    e(f"s_lshr_b32 s{S_END}, s{S_END}, 7")
    e(f"s_add_u32 s{S_DPAD}, s{S_START}, 31")
    e(f"s_and_b32 s{S_DPAD}, s{S_DPAD}, 31")
    e(f"s_mov_b32 s{S_MASK}, 0xffffffe0")
    e(f"s_mov_b32 s{S_80}, 80")
    e("v_lshlrev_b32 v2, 2, v0")
    e(f"v_lshlrev_b32 v3, 4, v{V_LANE}")
    e("s_lshl_b32 s12, s2, 10")
    e(f"s_add_u32 s12, s12, {hex(WS_TAB)}")
    e("s_lshl_b32 s13, s2, 12")
    e(f"s_add_u32 s13, s13, {hex(WS_Q)}")
    e(f"s_mov_b32 s14, {hex(WS_W3)}")
    e("s_waitcnt lgkmcnt(0)")
    srd(S_WS, 10, 11, WS_SIZE)
    stamp(1)
    e(f"buffer_load_dword v4, v2, {sr(S_WS,4)}, s12 offen")
    for f in range(4):
        e(f"buffer_load_dwordx4 {vr(V_Q+4*f,4)}, v3, {sr(S_WS,4)}, s13 offen offset:{f*1024}")
    for f in range(4):
        e(f"buffer_load_dwordx4 {vr(V_W3+4*f,4)}, v3, {sr(S_WS,4)}, s14 offen offset:{f*1024}")
    srd(S_EA, 6, 7, E * 32)
    srd(S_P, 10, 11, N * 128, stride=128, add=WS_P)
    srd(S_X, 4, 5, N * 128)
    srd(S_OUT, 8, 9, N * 128)
    fill_pads()
    e(f"v_lshlrev_b32 v5, 4, v0")
    for k in range(3):
        e(f"ds_write_b128 v5, {vr(V_T+4,4)} offset:{L_T+k*4096}")
    e("v_cmp_gt_u32 vcc, 32, v0")
    e("s_mov_b64 exec, vcc")
    e(f"ds_write_b128 v5, {vr(V_T+4,4)} offset:{L_T+3*4096}")
    e("s_mov_b64 exec, -1")
    e(f"v_lshrrev_b32 v5, 4, v{V_N}")
    e("v_lshlrev_b32 v5, 5, v5")
    e(f"v_bfe_u32 v6, v{V_N}, 2, 1")
    e("v_lshl_add_u32 v5, v6, 4, v5")
    e(f"v_bfe_u32 v6, v{V_N}, 3, 1")
    e("v_lshl_add_u32 v5, v6, 3, v5")
    e(f"v_and_b32 v6, 3, v{V_N}")
    e("v_lshl_add_u32 v5, v6, 1, v5")
    e(f"s_mul_i32 s{S_TMP}, s{S_WAVE}, 2560")
    e(f"s_add_u32 s{S_TMP}, s{S_TMP}, {L_M}")
    e(f"v_add_u32 v{V_CM}, s{S_TMP}, v5")
    e(f"v_lshlrev_b32 v6, 4, v{V_H}")
    e(f"v_add_u32 v{V_CT}, {L_T}, v6")
    e(f"v_mad_u32_u24 v7, v{V_N}, s{S_80}, v6")
    e(f"v_add_u32 v{V_MRD}, s{S_TMP}, v7")
    e(f"v_mov_b32 v{V_ONE}, 0x3f80")
    e(f"v_mov_b32 v{V_ZERO}, 0")
    e(f"s_lshl_b32 s{S_XB}, s{S_WAVE}, 13")
    e(f"s_add_u32 s{S_XB}, s{S_XB}, {L_XR}")
    e(f"s_lshl_b32 s{S_EB}, s{S_WAVE}, 12")
    e(f"s_add_u32 s{S_EB}, s{S_EB}, {L_ER}")
    e(f"v_bfe_u32 v1, v{V_N}, 1, 3")
    e(f"v_xor_b32 v1, v1, v{V_H}")
    e(f"v_lshlrev_b32 v{V_XRD}, 7, v{V_N}")
    e(f"v_add_u32 v{V_XRD}, s{S_XB}, v{V_XRD}")
    for s in (3, 2, 1, 0):
        e(f"v_xor_b32 v{V_T}, {2*s}, v1")
        e(f"v_lshl_add_u32 v{V_XRD+s}, v{V_T}, 4, v{V_XRD}")
    e(f"v_bfe_u32 v1, v{V_N}, 3, 1")
    e(f"v_xor_b32 v1, v1, v{V_H}")
    e("v_lshlrev_b32 v1, 4, v1")
    e(f"v_lshl_add_u32 v1, v{V_N}, 5, v1")
    e(f"v_add_u32 v{V_ERD}, s{S_EB}, v1")
    e(f"v_lshrrev_b32 v1, 4, v{V_LANE}")
    e(f"v_xor_b32 v1, v1, v{V_LANE}")
    e("v_and_b32 v1, 1, v1")
    e(f"v_lshlrev_b32 v{V_EH}, 4, v1")
    e(f"v_lshrrev_b32 v1, 4, v{V_LANE}")
    e(f"v_xor_b32 v1, v1, v{V_LANE}")
    e("v_and_b32 v1, 7, v1")
    e(f"v_lshlrev_b32 v{V_XI+1}, 4, v1")
    e(f"v_xor_b32 v{V_XI+3}, 64, v{V_XI+1}")
    e(f"v_mov_b32 v{V_XI+5}, v{V_XI+1}")
    e(f"v_mov_b32 v{V_XI+7}, v{V_XI+3}")
    e(f"v_subrev_u32 v1, s{S_START}, v{V_N}")
    e("v_and_b32 v1, 31, v1")
    e(f"v_add_u32 v1, s{S_START}, v1")
    e(f"v_cmp_gt_u32 {sr(S_VALID,2)}, s{S_END}, v1")
    e(f"v_lshlrev_b32 v{V_NODEOFF}, 7, v1")
    for i in range(32):
        e(f"v_mov_b32 v{V_ACC+i}, 0")
    e("v_lshrrev_b32 v1, 5, v0")
    e(f"v_lshl_add_u32 v1, v{V_N}, 3, v1")
    e(f"v_lshlrev_b32 v{V_CHB}, 17, v1")
    e(f"v_cmp_gt_u32 vcc, {NCH}, v1")
    e(f"v_lshlrev_b32 v{V_SEG}, 14, v1")
    e(f"v_mov_b32 v{V_KD}, 0")
    e("s_waitcnt vmcnt(8)")
    stamp(2)
    e("v_cndmask_b32 v4, 0, v4, vcc")
    e(f"v_lshrrev_b32 v{V_CNT}, 16, v4")
    e("v_and_b32 v4, 0xffff, v4")
    e(f"v_lshl_add_u32 v{V_SEG}, v4, 2, v{V_SEG}")
    rec_loads("K2_RL0")
    e(f"v_mov_b32 v{V_POS}, v{V_CNT}")
    wave_scan(V_POS, 1)
    e(f"v_readlane_b32 s{S_TMP}, v{V_POS}, 63")
    e(f"v_sub_u32 v{V_POS}, v{V_POS}, v{V_CNT}")
    e(f"s_lshl_b32 s{S_TMP+1}, s{S_WAVE}, 2")
    e(f"v_mov_b32 v1, s{S_TMP}")
    e(f"v_mov_b32 v4, s{S_TMP+1}")
    e(f"ds_write_b32 v4, v1 offset:{L_MISC}")
    e("s_waitcnt lgkmcnt(0)")
    e("s_barrier")
    e(f"v_mad_u32_u24 v5, v{V_N}, s{S_80}, v5")
    e(f"ds_write_b16 v5, v{V_ONE} offset:{L_T}")
    e(f"ds_read_b128 v[4:7], v{V_ZERO} offset:{L_MISC}")
    e(f"v_mad_u32_u24 v1, v{V_N}, s{S_80}, v{V_CT}")
    e(f"ds_read_b128 {vr(V_I,4)}, v1")
    e(f"ds_read_b128 {vr(V_I+4,4)}, v1 offset:32")
    e("s_waitcnt lgkmcnt(2)")
    e("v_readfirstlane_b32 s12, v4")
    e("v_readfirstlane_b32 s13, v5")
    e("v_readfirstlane_b32 s14, v6")
    e("v_readfirstlane_b32 s15, v7")
    e("s_nop 1")
    e("s_add_u32 s16, s12, s13")
    e("s_add_u32 s17, s16, s14")
    e(f"s_add_u32 s{S_TOTAL}, s17, s15")
    e(f"s_cmp_eq_u32 s{S_WAVE}, 1")
    e("s_cselect_b32 s18, s12, 0")
    e(f"s_cmp_eq_u32 s{S_WAVE}, 2")
    e("s_cselect_b32 s18, s16, s18")
    e(f"s_cmp_eq_u32 s{S_WAVE}, 3")
    e("s_cselect_b32 s18, s17, s18")
    e(f"v_add_u32 v{V_POS}, s18, v{V_POS}")
    e(f"s_mov_b32 s{S_WINLO}, 0")
    e("K2_ROUND:")
    R = V_C[0]
    e(f"s_add_u32 s{S_TMP}, s{S_WINLO}, {CAPT*32}")
    e(f"v_add_u32 v1, v{V_POS}, v{V_KD}")
    e(f"v_sub_u32 v{V_REM}, s{S_TMP}, v1")
    e(f"v_sub_u32 v4, v{V_CNT}, v{V_KD}")
    e(f"v_min_i32 v{V_REM}, v{V_REM}, v4")
    e("K2_COPY:")
    e(f"v_add_u32 v1, v{V_POS}, v{V_KD}")
    e(f"v_subrev_u32 v1, s{S_WINLO}, v1")
    e("v_lshlrev_b32 v4, 1, v1")
    e("v_lshlrev_b32 v5, 2, v1")
    e(f"s_mov_b32 s{S_TMP}, 0x1ffff")
    e("s_waitcnt vmcnt(0)")
    stamp(3)
    for i in range(4 * NQ):
        e(f"v_cmpx_lt_i32 vcc, {i}, v{V_REM}")
        if i % 2 == 0:
            e("s_cbranch_execz K2_CPD")
        e(f"v_lshrrev_b32 v6, 17, v{R+i}")
        e(f"v_and_or_b32 v7, v{R+i}, s{S_TMP}, v{V_CHB}")
        e(f"ds_write_b16 v4, v6 offset:{L_LA+2*i}")
        e(f"ds_write_b32 v5, v7 offset:{L_LB+4*i}")
    e("K2_CPD:")
    e("s_mov_b64 exec, -1")
    e(f"v_med3_i32 v1, v{V_REM}, 0, {4*NQ}")
    e(f"v_add_u32 v{V_KD}, v{V_KD}, v1")
    e(f"v_subrev_u32 v{V_REM}, {4*NQ}, v{V_REM}")
    e(f"v_cmp_lt_i32 vcc, 0, v{V_REM}")
    e("s_cbranch_vccz K2_CPE")
    rec_loads("K2_RL1")
    e("s_branch K2_COPY")
    e("K2_CPE:")
    e("s_waitcnt lgkmcnt(0)")
    e("s_barrier")
    stamp(4)
    if DIAG:
        e("s_waitcnt lgkmcnt(0)")
    e(f"s_sub_u32 s{S_TMP}, s{S_TOTAL}, s{S_WINLO}")
    e(f"s_min_u32 s{S_TMP}, s{S_TMP}, {CAPT*32}")
    e(f"s_add_u32 s{S_TMP}, s{S_TMP}, 31")
    e(f"s_lshr_b32 s{S_TMP}, s{S_TMP}, 5")
    e(f"s_add_u32 s{S_TMP}, s{S_TMP}, 3")
    e(f"s_sub_u32 s{S_TMP}, s{S_TMP}, s{S_WAVE}")
    e(f"s_lshr_b32 s{S_NT}, s{S_TMP}, 2")
    e(f"s_cmp_eq_u32 s{S_NT}, 0")
    e("s_cbranch_scc1 K2_RDONE")
    e(f"s_lshl_b32 s{S_TMP}, s{S_WAVE}, 6")
    e(f"s_add_u32 s{S_TMP}, s{S_TMP}, {L_LA-512}")
    e(f"v_lshrrev_b32 v1, 3, v{V_LANE}")
    e(f"v_lshl_add_u32 v{V_RA}, v1, 1, s{S_TMP}")
    e(f"s_lshl_b32 s{S_TMP}, s{S_WAVE}, 7")
    e(f"s_add_u32 s{S_TMP}, s{S_TMP}, {L_LB-1024}")
    e(f"v_lshrrev_b32 v1, 1, v{V_LANE}")
    e(f"v_lshl_add_u32 v{V_RB}, v1, 2, s{S_TMP}")
    e(f"v_lshl_add_u32 v{V_RD}, v{V_N}, 2, s{S_TMP}")
    e(f"s_or_b32 s{S_EB}, s{S_EB}, 2048")
    e(f"v_and_b32 v{V_ERD}, 0xfffff7ff, v{V_ERD}")
    T = V_T
    for k in range(4):
        e(f"ds_read_u16 v{V_XI+2*k}, v{V_RA} offset:{2*256+k*16}")
    for j in range(3):
        e(f"ds_read_b32 v{T+j}, v{V_RB} offset:{(2+j)*512}")
    for k in range(4):
        e(f"ds_read_u16 v{T+4+k}, v{V_RA} offset:{3*256+k*16}")
    e(f"ds_read_b32 v{V_DB}, v{V_RD} offset:{2*512}")
    e("s_waitcnt lgkmcnt(0)")
    for j in range(3):
        e(f"v_and_or_b32 v{T+j}, v{T+j}, s{S_MASK}, v{V_EH}")
    e(f"s_xor_b32 s{S_TMP}, s{S_EB}, 2048")
    e(f"s_mov_b32 m0, s{S_TMP}")
    e("s_nop 0")
    e(f"buffer_load_dwordx4 v{T}, {sr(S_EA,4)}, 0 offen lds")
    for k in range(4):
        e(f"s_add_u32 m0, s{S_XB}, {k*1024}")
        e("s_nop 0")
        e(f"buffer_load_dwordx4 {vr(V_XI+2*k,2)}, {sr(S_P,4)}, 0 idxen offen lds")
    e(f"s_add_u32 m0, s{S_TMP}, 1024")
    for k in range(4):
        e(f"v_mov_b32 v{V_XI+2*k}, v{T+4+k}")
    e(f"buffer_load_dwordx4 v{T+1}, {sr(S_EA,4)}, 0 offen lds")
    for k in range(4):
        e(f"s_add_u32 m0, s{S_XB}, {4096+k*1024}")
        e("s_nop 0")
        e(f"buffer_load_dwordx4 {vr(V_XI+2*k,2)}, {sr(S_P,4)}, 0 idxen offen lds")
    e(f"s_mov_b32 m0, s{S_EB}")
    e("s_nop 0")
    e(f"buffer_load_dwordx4 v{T+2}, {sr(S_EA,4)}, 0 offen lds")
    e(f"v_and_b32 v{V_DB}, 31, v{V_DB}")
    e(f"v_mad_u32_u24 v{V_AT}, v{V_DB}, s{S_80}, v{V_CT}")
    e(f"v_mad_u32_u24 v{V_AMP[0]}, v{V_DB}, s{S_80}, v{V_CM}")
    e("s_waitcnt vmcnt(6)")
    for s in range(4):
        e(f"ds_read_b128 {vr(V_AP+4*s,4)}, v{V_XRD+s}")
    e(f"ds_read_b128 {vr(V_AE,4)}, v{V_ERD}")
    e(f"ds_read_b128 {vr(V_AS,4)}, v{V_AT}")
    e(f"ds_read_b128 {vr(V_AS+4,4)}, v{V_AT} offset:32")
    for k in range(4):
        e(f"ds_read_u16 v{V_XI+2*k}, v{V_RA} offset:{4*256+k*16}")
    e(f"ds_read_b32 v{V_EB}, v{V_RB} offset:{5*512}")
    e(f"ds_read_b32 v{V_DB}, v{V_RD} offset:{3*512}")
    gen_iter(1, silu=False)
    for i in range(8):
        e(f"v_mov_b32 v{V_MS+8+i}, 0")
        e(f"v_mov_b32 v{V_SM+i}, 0")
    if DIAG:
        e("s_waitcnt lgkmcnt(0)")
    stamp(5)
    if DIAG:
        e("s_waitcnt lgkmcnt(0)")
    e("K2_LOOP:")
    gen_iter(0)
    e(f"s_sub_u32 s{S_NT}, s{S_NT}, 1")
    e(f"s_cmp_eq_u32 s{S_NT}, 0")
    e("s_cbranch_scc1 K2_LEND")
    gen_iter(1)
    e(f"s_sub_u32 s{S_NT}, s{S_NT}, 1")
    e(f"s_cmp_lg_u32 s{S_NT}, 0")
    e("s_cbranch_scc1 K2_LOOP")
    e("K2_LEND:")
    e("s_nop 1")
    d = vr(V_ACC + 16, 16)
    for s in range(2):
        e(f"{MF} {d}, {vr(V_MS+8+4*s,4)}, {vr(V_SM+4*s,4)}, {d}")
    e("s_waitcnt vmcnt(0) lgkmcnt(0)")
    e("K2_RDONE:")
    e(f"s_add_u32 s{S_WINLO}, s{S_WINLO}, {CAPT*32}")
    e(f"s_cmp_ge_u32 s{S_WINLO}, s{S_TOTAL}")
    e("s_cbranch_scc1 K2_EPI")
    e("s_barrier")
    fill_pads()
    rec_loads("K2_RL2")
    e("s_waitcnt lgkmcnt(0)")
    e("s_barrier")
    e("s_branch K2_ROUND")
    e("K2_EPI:")
    stamp(6)
    XF = V_C[0]
    WU = V_C[0] + 16
    e(f"v_lshl_add_u32 v1, v{V_H}, 4, v{V_NODEOFF}")
    for s in range(4):
        e(f"buffer_load_dwordx4 {vr(XF+4*s,4)}, v1, {sr(S_X,4)}, 0 offen offset:{s*32}")
    e(f"s_and_b32 s{S_TMP}, s{S_WAVE}, 1")
    e(f"s_lshl_b32 s{S_TMP}, s{S_TMP}, 13")
    e(f"s_add_u32 s{S_TMP}, s{S_TMP}, {hex(WS_WU)}")
    e(f"s_add_u32 s{S_TMP+1}, s{S_TMP}, 4096")
    for ks in range(8):
        e(f"buffer_load_dwordx4 {vr(WU+4*ks,4)}, v3, {sr(S_WS,4)}, s{S_TMP+(ks>>2)} offen offset:{(ks&3)*1024}")
    e("s_barrier")
    e(f"v_add_u32 v4, s{S_XB}, v3")
    e("s_nop 7")
    for q in range(8):
        e(f"ds_write_b128 v4, {vr(V_ACC+4*q,4)} offset:{q*1024}")
    e("s_waitcnt lgkmcnt(0)")
    e("s_barrier")
    e(f"s_lshl_b32 s{S_TMP}, s{S_WAVE}, 11")
    e(f"s_add_u32 s{S_TMP}, s{S_TMP}, {L_XR}")
    e(f"v_add_u32 v4, s{S_TMP}, v3")
    RB = V_AP
    for w in range(4):
        for qq in range(2):
            e(f"ds_read_b128 {vr(RB+8*w+4*qq,4)}, v4 offset:{w*8192+qq*1024}")
    e(f"s_mov_b32 s{S_TMP+1}, {hex(LN2)}")
    e("s_waitcnt lgkmcnt(0)")
    for i in range(8):
        e(f"v_add_f32 v{RB+i}, v{RB+i}, v{RB+8+i}")
        e(f"v_add_f32 v{RB+16+i}, v{RB+16+i}, v{RB+24+i}")
    for i in range(8):
        e(f"v_add_f32 v{RB+i}, v{RB+i}, v{RB+16+i}")
    for i in range(8):
        e(f"v_mul_f32 v{RB+i}, s{S_TMP+1}, v{RB+i}")
    for q in range(4):
        e(f"v_cvt_pk_bf16_f32 v{RB+8+q}, v{RB+2*q}, v{RB+2*q+1}")
    e(f"s_lshl_b32 s{S_TMP}, s{S_WAVE}, 10")
    e(f"v_add_u32 v4, s{S_TMP}, v3")
    e(f"ds_write_b128 v4, {vr(RB+8,4)} offset:{L_ER}")
    e("s_waitcnt lgkmcnt(0)")
    e("s_barrier")
    stamp(7)
    e(f"s_cmp_ge_u32 s{S_WAVE}, 2")
    e("s_cbranch_scc1 K2_FIN")
    AG = V_AP
    for ks in range(4):
        e(f"ds_read_b128 {vr(AG+4*ks,4)}, v3 offset:{L_ER+ks*1024}")
    U = V_ACC
    e("s_waitcnt vmcnt(0)")
    for ks in range(4):
        e(f"{MF} {vr(U,16)}, {vr(WU+4*ks,4)}, {vr(XF+4*ks,4)}, {'0' if ks==0 else vr(U,16)}")
    e("s_waitcnt lgkmcnt(0)")
    for ks in range(4):
        e(f"{MF} {vr(U,16)}, {vr(WU+16+4*ks,4)}, {vr(AG+4*ks,4)}, {vr(U,16)}")
    e(f"s_mov_b32 s{S_TMP+1}, {hex(LOG2E)}")
    e(f"s_lshl_b32 s{S_TMP}, s{S_WAVE}, 6")
    e(f"v_lshl_add_u32 v1, v{V_H}, 3, v{V_NODEOFF}")
    e("s_nop 15")
    for q in range(8):
        e(f"v_cvt_pk_bf16_f32 v{V_T+q}, v{U+2*q}, v{U+2*q+1}")
    for q in range(8):
        e(f"v_lshlrev_b32 v{U+2*q}, 16, v{V_T+q}")
        e(f"v_and_b32 v{U+2*q+1}, 0xffff0000, v{V_T+q}")
    for i in range(16):
        e(f"v_mul_f32 v{V_T+i}, s{S_TMP+1}, v{U+i}")
    for i in range(16):
        e(f"v_exp_f32 v{V_T+i}, -v{V_T+i}")
    for i in range(16):
        e(f"v_add_f32 v{V_T+i}, 1.0, v{V_T+i}")
    for i in range(16):
        e(f"v_rcp_f32 v{V_T+i}, v{V_T+i}")
    for i in range(16):
        e(f"v_mul_f32 v{V_T+i}, v{U+i}, v{V_T+i}")
    for q in range(8):
        e(f"v_cvt_pk_bf16_f32 v{U+q}, v{V_T+2*q}, v{V_T+2*q+1}")
    e(f"s_mov_b64 exec, {sr(S_VALID,2)}")
    for q in range(4):
        e(f"buffer_store_dwordx2 {vr(U+2*q,2)}, v1, {sr(S_OUT,4)}, s{S_TMP} offen offset:{q*16}")
    if DIAG:
        e("s_waitcnt vmcnt(0)")
    e("K2_FIN:")
    stamp(8)
    stamp_flush(9, 1, S_WAVE, 4, S_WS)
    e("K2_END:")
    e("s_endpgm")

def kd(name, vgprs, sgprs):
    acc = (vgprs + 3) // 4 * 4
    return f""".p2align 6
.amdhsa_kernel {name}
  .amdhsa_next_free_vgpr {vgprs}
  .amdhsa_next_free_sgpr {sgprs}
  .amdhsa_accum_offset {acc}
  .amdhsa_group_segment_fixed_size 0
  .amdhsa_kernarg_size 72
  .amdhsa_user_sgpr_count 2
  .amdhsa_user_sgpr_kernarg_segment_ptr 1
  .amdhsa_system_sgpr_workgroup_id_x 1
.end_amdhsa_kernel
"""

def main(path):
    hdr = f"""; MPNN edge-MLP: out = silu([x, segsum(silu([x[src], x[dst], e] @ w_msg), dst)] @ w_upd)
; @launch kernel=mpnn_prep_kernel grid=({K1_GRID},1,1) block=(512,1,1) lds={K1_LDS}
; @launch kernel=mpnn_main_kernel grid=({NG},1,1) block=(256,1,1) lds={K2_LDS}
.amdgcn_target "amdgcn-amd-amdhsa--gfx950"
.text
"""
    gen_k1()
    gen_k2()
    body = "\n".join(out) + "\n"
    tail = '.section .rodata,"a"\n' + kd("mpnn_prep_kernel", 128, 96 if DIAG else 64) + kd("mpnn_main_kernel", K2_VGPRS, 96 if DIAG else 64)
    open(path, "w").write(hdr + body + tail)

if __name__ == "__main__":
    main(sys.argv[1] if len(sys.argv) > 1 else "standalone__mpnn_edge_mlp__graph.s")
```
